```python
import torch

def _softmax(x, axis=-1):
    return torch.softmax(x, dim=axis)
def _gelu(x):
    return torch.nn.functional.gelu(x, approximate="tanh")
def _silu(x):
    return torch.nn.functional.silu(x)
def _sigmoid(x):
    return torch.sigmoid(x)
def _layernorm(x, axis=-1, eps=1e-5):
    m = x.mean(dim=axis, keepdim=True)
    v = x.var(dim=axis, keepdim=True, unbiased=False)
    return (x - m) / torch.sqrt(v + eps)
def _scatter_add(tgt, idx, src, axis=0):
    return tgt.clone().index_add_(axis, idx, src)
def _segment_sum(src, seg, n):
    out = torch.zeros((n,) + src.shape[1:], dtype=src.dtype)
    return out.index_add_(0, seg, src)
def _pad(x, pw):
    flat = tuple(v for pair in reversed(pw) for v in pair)
    return torch.nn.functional.pad(x, flat)

kernel_name = 'recurrent_scan__sliding_block_cached__mixer_token_mlp__decode'

def setup_inputs():

    _w = (lambda a: (lambda t: t.to(torch.bfloat16) if t.is_floating_point() else t)(torch.as_tensor(a)))
    def _A_setup():
        B, Sq, D = 2, 1, 512
        Hq, Hkv, Sk, Dh = 32, 32, 4096, 128
        assert Hq % Hkv == 0, (Hq, Hkv)
        return {
            "x": _w((lambda *s: torch.randn(*s, dtype=torch.bfloat16) * 0.4)(B, Sq, D)),
            "k_cache": _w((lambda *s: torch.randn(*s, dtype=torch.bfloat16) * 1.6)(B, Hkv, Sk, Dh)),
            "v_cache": _w((lambda *s: torch.randn(*s, dtype=torch.bfloat16) * 1.6)(B, Hkv, Sk, Dh)),
            "wq": _w((lambda *s: torch.randn(*s, dtype=torch.bfloat16) * 1.6)(D, Hq * Dh) * (D ** -0.5)),
            "wo": _w((lambda *s: torch.randn(*s, dtype=torch.bfloat16) * 1.6)(Hq * Dh, D) * ((Hq * Dh) ** -0.5)),
        }
    _A_in = _A_setup()

    def _B_setup():
        B, S, D, F = 2, 1, 512, 1376
        return {
            "x": _w((lambda *s: torch.randn(*s, dtype=torch.bfloat16) * 0.4)(B, S, D)),
            "w1": _w((lambda *s: torch.randn(*s, dtype=torch.bfloat16) * 1.6)(S, F) * (S ** -0.5)),
            "b1": _w((lambda *s: torch.randn(*s, dtype=torch.bfloat16) * 1.6)(F) * 0.02),
            "w2": _w((lambda *s: torch.randn(*s, dtype=torch.bfloat16) * 1.6)(F, S) * (F ** -0.5)),
            "b2": _w((lambda *s: torch.randn(*s, dtype=torch.bfloat16) * 1.6)(S) * 0.02),
        }
    _B_in = _B_setup()

    return {
        "A_x": _A_in["x"],
        "A_k_cache": _A_in["k_cache"],
        "A_v_cache": _A_in["v_cache"],
        "A_wq": _A_in["wq"],
        "A_wo": _A_in["wo"],
        "B_x": _B_in["x"],
        "B_w1": _B_in["w1"],
        "B_b1": _B_in["b1"],
        "B_w2": _B_in["w2"],
        "B_b2": _B_in["b2"],
    }

def reference(A_x, A_k_cache, A_v_cache, A_wq, A_wo, B_x, B_w1, B_b1, B_w2, B_b2):
    def _A_ref(x, k_cache, v_cache, wq, wo):
        B, Sq, D = x.shape
        Hq, Dh = 32, 128
        Hkv, Sk = k_cache.shape[1], k_cache.shape[2]
        W = min(4096, max(256, Sk // 4))
        rep = Hq // Hkv
        q = (lambda x, *d: x.permute(*d))((x @ wq).reshape(B, Sq, Hq, Dh), 0, 2, 1, 3)
        k = (lambda x, n, axis: torch.repeat_interleave(x, n, dim=axis))(k_cache[:, :, Sk - W:, :], rep, axis=1)
        v = (lambda x, n, axis: torch.repeat_interleave(x, n, dim=axis))(v_cache[:, :, Sk - W:, :], rep, axis=1)
        scores = torch.einsum("bhqd,bhkd->bhqk", q, k) * (Dh ** -0.5)
        p = _softmax(scores, axis=-1)
        o = torch.einsum("bhqk,bhkd->bhqd", p, v)
        return (lambda x, *d: x.permute(*d))(o, 0, 2, 1, 3).reshape(B, Sq, Hq * Dh) @ wo

    def _B_ref(x, w1, b1, w2, b2):
        B, S, D = x.shape
        h = _layernorm(x, axis=-1)
        u = torch.einsum("bsd,sf->bdf", h, w1) + b1
        u = _gelu(u)
        y = torch.einsum("bdf,fs->bds", u, w2) + b2
        return (lambda x, *d: x.permute(*d))(y, 0, 2, 1)

    x = A_x
    xn = _layernorm(x, axis=-1)
    s = _A_ref(xn, A_k_cache, A_v_cache, A_wq, A_wo)
    g = _silu(_B_ref(xn, B_w1, B_b1, B_w2, B_b2))
    return x + s * g
```

```python
NAME = "recurrent_scan__sliding_block_cached__mixer_token_mlp__decode"
HDR = open("cdna_kernels/%s.s.ref" % NAME).read().split("; Override launch geometry")[0]

class Asm:
    def __init__(self):
        self.lines = []
    def __call__(self, s=""):
        for l in s.split("\n"):
            self.lines.append("    " + l.strip() if l.strip() and not l.strip().endswith(":") else l.strip())
    def text(self):
        return "\n".join(self.lines) + "\n"

def wrap(body, grid, block, lds, vgpr, sgpr=96, accum=None, extra_desc=""):
    k = NAME + "_kernel"
    if accum is None:
        accum = (vgpr + 3) // 4 * 4
    s = HDR
    s += f"; @launch grid=({grid},1,1) block=({block},1,1) lds={lds}\n"
    s += '.amdgcn_target "amdgcn-amd-amdhsa--gfx950"\n.text\n'
    s += f".globl {k}\n.p2align 8\n.type {k},@function\n{k}:\n"
    s += body
    s += '.section .rodata,"a"\n.p2align 6\n'
    s += f".amdhsa_kernel {k}\n  .amdhsa_next_free_vgpr {vgpr}\n  .amdhsa_next_free_sgpr {sgpr}\n  .amdhsa_accum_offset {accum}\n"
    s += "  .amdhsa_group_segment_fixed_size 0\n  .amdhsa_kernarg_size 104\n  .amdhsa_user_sgpr_count 2\n  .amdhsa_user_sgpr_kernarg_segment_ptr 1\n  .amdhsa_system_sgpr_workgroup_id_x 1\n"
    s += extra_desc
    s += ".end_amdhsa_kernel\n"
    return s
```

```python
import sys, struct
from asmlib import *

def f2u(x): return struct.unpack("<I", struct.pack("<f", x))[0]

QX, OX, YX = 0x10000, 0x60000, 0xA0000
L_Q, L_O, L_G, L_XN = 0, 256, 1280, 2048
LOG2E = 1.4426950408889634

def gen(fname, W=4, B1=14, stamps=False, ntf="nt", pollpair=4, stf="sc0 sc1", ldf="sc0 sc1", endbar=True, spin=1 << 14, prefetch=True):
    assert W <= 8
    a = Asm()
    st = {"n": 0}
    def stamp(i):
        if stamps: a(f"s_memrealtime s[{70+2*i}:{71+2*i}]")
    def dump_stamps(n):
        if not stamps: return
        a("s_waitcnt lgkmcnt(0)")
        a(f"s_mul_i32 s60, s2, {12*128}\ns_lshl_b32 s61, s3, 1\ns_add_u32 s60, s60, s61\ns_add_u32 s60, s60, 0x8000000")
        a("s_add_u32 s60, s28, s60\ns_addc_u32 s61, s29, 0\ns_mov_b64 exec, 1\nv_mov_b32 v2, 0")
        for i in range(n):
            a(f"v_mov_b32 v4, s{70+2*i}\nv_mov_b32 v5, s{71+2*i}\nglobal_store_dwordx2 v2, v[4:5], s[60:61] offset:{8*i}\ns_nop 1")
    DPP = "row_mask:0xf bank_mask:0xf"
    if stamps:
        for i in range(10): a(f"s_mov_b64 s[{70+2*i}:{71+2*i}], 0")
    stamp(0)
    a("s_load_dwordx8 s[4:11], s[0:1], 8")
    a("s_load_dwordx2 s[28:29], s[0:1], 96")
    a("v_readfirstlane_b32 s3, v0")
    a("s_cmp_ge_u32 s2, 256\ns_cbranch_scc1 L_end")
    a("s_and_b32 s30, s2, 7\ns_bfe_u32 s31, s2, 0x20003\ns_lshl2_add_u32 s30, s30, s31")
    a("s_bfe_u32 s31, s2, 0x20005")
    a("s_lshr_b32 s32, s2, 7")
    a("s_lshl2_add_u32 s35, s30, s31")
    a("s_lshl_b32 s33, s32, 5\ns_add_u32 s33, s33, s30")
    a("s_cmp_ge_u32 s3, 512\ns_cbranch_scc1 L_aux")
    K, V, WO, QM, D = 8, 40, 72, 88, 104
    MK = 112
    vKoff, vVoff, vT, vT2 = 1, 2, 3, 4
    vWOoff, vQa, vOa, vOG, vML, vY, vTag = 116, 117, 118, 119, 120, 121, 122
    a("s_lshl_b32 s34, s33, 20\ns_lshl_b32 s36, s31, 16\ns_add_u32 s34, s34, s36\ns_add_u32 s34, s34, 0xC1000")
    a(f"v_and_b32 v{vT}, 0x1c0, v0\nv_lshlrev_b32 v{vT}, 7, v{vT}")
    a(f"v_and_b32 v{vT2}, 3, v0\nv_lshl_or_b32 v{vKoff}, v{vT2}, 4, v{vT}")
    a(f"v_and_b32 v{vT2}, 12, v0\nv_lshl_or_b32 v{vKoff}, v{vT2}, 6, v{vKoff}")
    a(f"v_and_b32 v{vT2}, 48, v0\nv_lshl_or_b32 v{vKoff}, v{vT2}, 2, v{vKoff}")
    a(f"v_lshl_or_b32 v{vVoff}, v{vT2}, 6, v{vT}\nv_and_b32 v{vT2}, 15, v0\nv_lshl_or_b32 v{vVoff}, v{vT2}, 4, v{vVoff}")
    a("s_waitcnt lgkmcnt(0)")
    stamp(1)
    a("s_add_u32 s4, s4, s34\ns_addc_u32 s5, s5, 0")
    loads = []
    for t in range(8): loads.append((K + 4 * t, vKoff, 4, -4096 + (t >> 2) * 4096 + (t & 3) * 1024))
    for t in range(8): loads.append((V + 4 * t, vVoff, 6, -4096 + (t >> 2) * 4096 + (t & 3) * 256))
    for t in range(4): loads.append((WO + 4 * t, vWOoff, 10, t * 1024))
    S = {"issued": 0, "done": 0}
    def issue(throttle=True):
        n = S["issued"]
        if n >= len(loads): return
        if throttle and n >= W: need(n - W)
        r, vo, sb, imm = loads[n]
        a(f"global_load_dwordx4 v[{r}:{r+3}], v{vo}, s[{sb}:{sb+1}] offset:{imm} {ntf}")
        S["issued"] += 1
    def need(n):
        if n < S["done"]: return
        a(f"s_waitcnt vmcnt({S['issued'] - n - 1})")
        S["done"] = n + 1
    for _ in range(W): issue()
    a("s_add_u32 s6, s6, s34\ns_addc_u32 s7, s7, 0")
    a("s_load_dword s37, s[28:29], 0")
    a("s_lshl_b32 s36, s35, 15\ns_add_u32 s10, s10, s36\ns_addc_u32 s11, s11, 0")
    a(f"v_and_b32 v{vT}, 63, v0")
    a(f"v_lshrrev_b32 v{vT2}, 3, v{vT}\nv_lshlrev_b32 v{vWOoff}, 12, v{vT2}\nv_and_b32 v{vT2}, 7, v0\nv_lshl_or_b32 v{vWOoff}, v{vT2}, 4, v{vWOoff}")
    a(f"s_lshl_b32 s36, s3, 1\nv_add_u32 v{vWOoff}, s36, v{vWOoff}")
    a("s_mov_b32 s40, 0x000f000f\ns_mov_b32 s41, s40\ns_lshl_b64 s[42:43], s[40:41], 4\ns_lshl_b64 s[44:45], s[40:41], 8\ns_lshl_b64 s[46:47], s[40:41], 12")
    a("s_mov_b32 s48, 0x22222222\ns_mov_b32 s49, s48\ns_lshl_b64 s[50:51], s[48:49], 1\ns_lshl_b64 s[52:53], s[48:49], 2")
    a(f"v_and_b32 v{vT2}, 1, v0\nv_lshlrev_b32 v{vT2}, 4, v{vT2}\nv_mov_b32 v5, 0xffff\nv_lshlrev_b32 v5, v{vT2}, v5")
    for r in range(4): a(f"v_cndmask_b32 v{MK+r}, 0, v5, s[{40+2*r}:{41+2*r}]")
    for r in range(16): a(f"v_mov_b32 v{QM+r}, 0")
    a(f"v_and_b32 v{vT2}, 48, v0\nv_lshlrev_b32 v{vQa}, 2, v{vT2}\nv_and_b32 v{vT2}, 3, v0\nv_lshl_or_b32 v{vQa}, v{vT2}, 4, v{vQa}")
    a(f"v_and_b32 v{vT2}, 16, v0\nv_lshlrev_b32 v{vOa}, 5, v{vT2}\nv_and_b32 v{vT2}, 15, v0\nv_lshl_or_b32 v{vOa}, v{vT2}, 3, v{vOa}")
    a(f"v_bfe_u32 v{vT2}, v0, 5, 1\nv_lshl_or_b32 v{vOa}, v{vT2}, 2, v{vOa}")
    a(f"v_and_b32 v{vT2}, 12, v0\nv_lshlrev_b32 v{vML}, 8, v{vT2}")
    a(f"v_and_b32 v{vT2}, 48, v0\nv_lshl_or_b32 v{vOG}, v{vT2}, 1, v{vML}\nv_and_b32 v{vT2}, 2, v0\nv_lshl_or_b32 v{vOG}, v{vT2}, 3, v{vOG}")
    a(f"s_lshl_b32 s36, s31, 7\nv_add_u32 v{vOG}, s36, v{vOG}")
    a(f"s_lshl_b32 s36, s33, 12\ns_add_u32 s36, s36, {OX}\ns_add_u32 s54, s28, s36\ns_addc_u32 s55, s29, 0")
    a(f"v_and_b32 v{vT2}, 4, v0\nv_lshlrev_b32 v{vY}, 12, v{vT2}\nv_and_b32 v{vT2}, 3, v0\nv_lshl_or_b32 v{vY}, v{vT2}, 5, v{vY}")
    a(f"v_bfe_u32 v{vT2}, v0, 5, 1\nv_lshl_or_b32 v{vY}, v{vT2}, 4, v{vY}\ns_lshl_b32 s36, s3, 9\nv_add_u32 v{vY}, s36, v{vY}")
    a(f"s_lshl_b32 s36, s32, 18\ns_lshl_b32 s38, s35, 7\ns_add_u32 s36, s36, s38\ns_add_u32 s36, s36, {YX}\ns_add_u32 s56, s28, s36\ns_addc_u32 s57, s29, 0")
    a("s_mov_b32 s58, 0xffff0000")
    a("s_mov_b32 s62, 0x07060500\ns_mov_b32 s63, 0x07060501\ns_mov_b32 s64, 0x07060502\ns_mov_b32 s65, 0x07060503")
    a("s_mov_b32 s66, 0x0c0c0400\ns_mov_b32 s67, 0x04000c0c")
    a("s_waitcnt lgkmcnt(0)")
    a(f"s_add_u32 s37, s37, 0x01010101\ns_xor_b32 s37, s37, 0xa9533c00\nv_mov_b32 v{vTag}, s37")
    while S["issued"] < B1: issue()
    stamp(2)
    a("s_barrier")
    stamp(3)
    for m in range(4):
        a(f"s_mov_b64 exec, s[{40+2*m}:{41+2*m}]\nds_read_b128 v[{QM+4*m}:{QM+4*m+3}], v{vQa} offset:{L_Q}")
    a("s_mov_b64 exec, -1")
    need(7)
    a("s_waitcnt lgkmcnt(0)")
    for m in range(4):
        for u in range(2):
            c = "0" if m == 0 else f"v[{D+4*u}:{D+4*u+3}]"
            a(f"v_mfma_f32_16x16x32_bf16 v[{D+4*u}:{D+4*u+3}], v[{QM+4*m}:{QM+4*m+3}], v[{K+16*u+4*m}:{K+16*u+4*m+3}], {c}")
    a("s_nop 6")
    x0, x1 = D, D + 4
    for r in range(1, 4):
        a(f"v_cndmask_b32 v{x0}, v{x0}, v{x0+r}, s[{46+2*r}:{47+2*r}]")
        a(f"v_cndmask_b32 v{x1}, v{x1}, v{x1+r}, s[{46+2*r}:{47+2*r}]")
    for qp in ("[1,0,3,2]", "[2,3,0,1]"):
        a("s_nop 0")
        a(f"v_add_f32_dpp v{x0}, v{x0}, v{x0} quad_perm:{qp} {DPP}")
        a(f"v_add_f32_dpp v{x1}, v{x1}, v{x1} quad_perm:{qp} {DPP}")
    a(f"v_cvt_pk_bf16_f32 v{vT}, v{x0}, v{x1}\nv_lshlrev_b32 v{x0}, 16, v{vT}\nv_and_b32 v{x1}, s58, v{vT}")
    sc = hex(f2u(128 ** -0.5))
    a(f"v_mul_f32 v{x0}, {sc}, v{x0}\nv_mul_f32 v{x1}, {sc}, v{x1}")
    a(f"v_cvt_pk_bf16_f32 v{vT}, v{x0}, v{x1}\nv_lshlrev_b32 v{x0}, 16, v{vT}\nv_and_b32 v{x1}, s58, v{vT}")
    a(f"v_max_f32 v{vT}, v{x0}, v{x1}\nv_mov_b32 v{vT2}, {L_O + 128}\ns_nop 0")
    a(f"v_max_f32_dpp v{vT}, v{vT}, v{vT} row_ror:4 {DPP}\ns_nop 1\nv_max_f32_dpp v{vT}, v{vT}, v{vT} row_ror:8 {DPP}")
    a("s_mov_b32 s68, 0x00010001\ns_mov_b32 s69, s68\ns_mov_b64 exec, s[68:69]")
    a(f"ds_max_f32 v{vT2}, v{vT}\ns_mov_b64 exec, -1")
    issue()
    a("s_waitcnt lgkmcnt(0)\ns_barrier")
    a(f"ds_read_b32 v{vT}, v{vT2}\ns_waitcnt lgkmcnt(0)")
    l2e = hex(f2u(LOG2E))
    a(f"v_sub_f32 v{x0}, v{x0}, v{vT}\nv_sub_f32 v{x1}, v{x1}, v{vT}\nv_mul_f32 v{x0}, {l2e}, v{x0}\nv_mul_f32 v{x1}, {l2e}, v{x1}")
    a(f"v_exp_f32 v{x0}, v{x0}\nv_exp_f32 v{x1}, v{x1}\ns_nop 0")
    a(f"v_add_f32 v{vT}, v{x0}, v{x1}\nv_cvt_pk_bf16_f32 v{x0}, v{x0}, v{x0}\nv_cvt_pk_bf16_f32 v{x1}, v{x1}, v{x1}")
    a(f"v_add_f32_dpp v{vT}, v{vT}, v{vT} row_ror:4 {DPP}\ns_nop 1\nv_add_f32_dpp v{vT}, v{vT}, v{vT} row_ror:8 {DPP}")
    a(f"s_mov_b64 exec, s[68:69]\nds_add_f32 v{vT2}, v{vT} offset:256\ns_mov_b64 exec, -1")
    for t in range(8):
        u, aa = t >> 2, t & 3
        for r in range(4):
            a(f"v_and_b32_dpp v{K+4*t+r}, v{D+4*u}, v{MK+r} row_newbcast:{4*aa} {DPP}")
    stamp(4)
    O = QM
    for t in range(8):
        while S["issued"] < 9 + t: issue()
        need(8 + t)
        issue(throttle=False) if S["issued"] - S["done"] < W else None
        c = "0" if t < 2 else f"v[{O+4*(t&1)}:{O+4*(t&1)+3}]"
        a(f"v_mfma_f32_16x16x32_bf16 v[{O+4*(t&1)}:{O+4*(t&1)+3}], v[{K+4*t}:{K+4*t+3}], v[{V+4*t}:{V+4*t+3}], {c}")
    while S["issued"] < len(loads): issue(throttle=False)
    a("s_nop 7")
    a(f"v_add_f32 v{O}, v{O}, v{O+4}\nv_add_f32 v{O+1}, v{O+1}, v{O+5}")
    a(f"ds_add_f32 v{vOa}, v{O} offset:{L_O}\nds_add_f32 v{vOa}, v{O+1} offset:{L_O+256}")
    a("s_waitcnt lgkmcnt(0)")
    stamp(5)
    a("s_barrier")
    G, M = V, V + 4
    a(f"s_mov_b32 s59, {spin}")
    a("L_opoll:")
    a(f"global_load_dwordx4 v[{G}:{G+3}], v{vOG}, s[54:55] {ldf}")
    a(f"global_load_dwordx4 v[{M}:{M+3}], v{vML}, s[54:55] offset:512 {ldf}")
    a("s_waitcnt vmcnt(0)")
    def chk(dst, g, t1):
        a(f"v_perm_b32 v{dst}, v{g+1}, v{g}, s66\nv_perm_b32 v{t1}, v{g+3}, v{g+2}, s67\nv_or_b32 v{dst}, v{dst}, v{t1}")
    chk(vT, G, 5); chk(vT2, M, 6)
    a(f"v_cmp_ne_u32 vcc, s37, v{vT}\nv_cmp_ne_u32 s[38:39], s37, v{vT2}\ns_or_b64 vcc, vcc, s[38:39]")
    a("s_cbranch_vccz L_ogot\ns_sub_u32 s59, s59, 1\ns_cbranch_scc0 L_opoll")
    a("L_ogot:")
    stamp(6)
    m_, l_ = M, M + 1
    a(f"v_and_b32 v{m_}, s58, v{m_}\ns_nop 1")
    a(f"v_max_f32_dpp v{vT}, v{m_}, v{m_} row_ror:4 {DPP}\ns_nop 1\nv_max_f32_dpp v{vT}, v{vT}, v{vT} row_ror:8 {DPP}")
    a(f"v_sub_f32 v{m_}, v{m_}, v{vT}\nv_mul_f32 v{m_}, {l2e}, v{m_}\nv_exp_f32 v{m_}, v{m_}\ns_nop 0")
    a(f"v_mul_f32 v{l_}, v{l_}, v{m_}")
    a(f"v_pk_mul_f32 v[{G}:{G+1}], v[{G}:{G+1}], v[{m_}:{m_+1}] op_sel_hi:[1,0]")
    a(f"v_pk_mul_f32 v[{G+2}:{G+3}], v[{G+2}:{G+3}], v[{m_}:{m_+1}] op_sel_hi:[1,0]")
    for ror in (4, 8):
        a(f"v_add_f32_dpp v{l_}, v{l_}, v{l_} row_ror:{ror} {DPP}")
        for r in range(4): a(f"v_add_f32_dpp v{G+r}, v{G+r}, v{G+r} row_ror:{ror} {DPP}")
    a(f"v_rcp_f32 v{m_}, v{l_}\ns_nop 0")
    a(f"v_pk_mul_f32 v[{G}:{G+1}], v[{G}:{G+1}], v[{m_}:{m_+1}] op_sel_hi:[1,0]")
    a(f"v_pk_mul_f32 v[{G+2}:{G+3}], v[{G+2}:{G+3}], v[{m_}:{m_+1}] op_sel_hi:[1,0]")
    for t in range(4): a(f"v_cvt_pk_bf16_f32 v{G+t}, v{G+t}, v{G+t}")
    for t in range(4):
        for r in range(4): a(f"v_and_b32 v{K+4*t+r}, v{G+t}, v{MK+r}")
        if t >= 1:
            c = "0" if t == 1 else f"v[{D}:{D+3}]"
            a(f"v_mfma_f32_16x16x32_bf16 v[{D}:{D+3}], v[{K+4*(t-1)}:{K+4*(t-1)+3}], v[{WO+4*(t-1)}:{WO+4*(t-1)+3}], {c}")
    a("s_nop 0")
    a(f"v_mfma_f32_16x16x32_bf16 v[{D}:{D+3}], v[{K+12}:{K+15}], v[{WO+12}:{WO+15}], v[{D}:{D+3}]")
    a("s_mov_b32 s68, 0xff\ns_mov_b32 s69, 0xff\ns_nop 5")
    Z = D + 4
    a(f"v_add_f32_dpp v{Z}, v{D+2}, v{D} row_ror:8 {DPP}\nv_add_f32_dpp v{Z+1}, v{D+3}, v{D+1} row_ror:8 {DPP}\ns_nop 0")
    a(f"v_permlane16_swap_b32 v{Z}, v{Z+2}\nv_permlane16_swap_b32 v{Z+1}, v{Z+3}")
    for k in range(4): a(f"v_perm_b32 v{Z+k}, v{Z+k}, v{vTag}, s{62+k}")
    a(f"s_mov_b64 exec, s[68:69]\nglobal_store_dwordx4 v{vY}, v[{Z}:{Z+3}], s[56:57] {stf}")
    stamp(7)
    if endbar: a("s_barrier")
    dump_stamps(8)
    a("L_end:\ns_endpgm")

    X, F, T, WQ = 8, 16, 32, 40
    W1, B1_, W2 = 104, 116, 128
    SEL = 140
    A0 = 148
    vXc, vB2, vXe, vL, vMB1, vRS1, vMean, vMB, vRS, vS = 1, 2, 3, 4, 5, 6, 156, 158, 160, 162
    vAcc = 164
    a(".p2align 6")
    a("L_aux:")
    a("s_load_dwordx2 s[12:13], s[0:1], 0\ns_load_dwordx8 s[16:23], s[0:1], 48\ns_load_dwordx2 s[24:25], s[0:1], 80")
    a("v_and_b32 v0, 63, v0")
    a("s_sub_u32 s34, s3, 512\ns_lshr_b32 s34, s34, 6")
    if prefetch:
        a("s_getpc_b64 s[38:39]\ns_and_b32 s38, s38, 0xffffc000" if False else "s_getpc_b64 s[38:39]")
        a("L_pc:\ns_sub_u32 s38, s38, L_pc-" + NAME + "_kernel\ns_subb_u32 s39, s39, 0")
        a(f"v_lshlrev_b32 v7, 7, v0\nglobal_load_dword v{vAcc+1}, v7, s[38:39]")
    a(f"v_lshlrev_b32 v{vL}, 5, v0\nv_mov_b32 v{vAcc+2}, 0x1000")
    a("s_lshl_b32 s36, s32, 10\ns_lshl3_add_u32 s36, s35, s36")
    a(f"v_lshrrev_b32 v{vS}, 4, v0\nv_lshlrev_b32 v{vS}, 1, v{vS}\nv_add_u32 v{vS+1}, s36, v{vS}")
    a(f"s_lshl1_add_u32 s36, s34, s36\nv_mov_b32 v{vS}, s36")
    a(f"v_mov_b32 v{vXc}, 0\nv_mov_b32 v{vB2}, 0\nv_mov_b32 v{vXe}, 0\nv_mul_u32_u24 v{vMean}, 48, v0\nv_mov_b32 v{vMB}, 0")
    a(f"v_lshrrev_b32 v{vRS}, 4, v0\nv_lshlrev_b32 v{vRS}, 17, v{vRS}\nv_and_b32 v{vRS+1}, 15, v0\nv_lshl_or_b32 v{vRS}, v{vRS+1}, 4, v{vRS}")
    a("s_lshr_b32 s42, s2, 5\ns_lshl_b32 s40, s42, 19\ns_lshl_b32 s41, s30, 8\ns_add_u32 s40, s40, s41")
    a("s_waitcnt lgkmcnt(0)")
    stamp(1)
    a(f"global_load_dwordx4 v[{X}:{X+3}], v{vL}, s[12:13]\nglobal_load_dwordx4 v[{X+4}:{X+7}], v{vL}, s[12:13] offset:16")
    for i, (d, s) in enumerate(((44, 16), (48, 18), (52, 20))):
        a(f"s_mov_b32 s{d}, s{s}\ns_mov_b32 s{d+1}, s{s+1}\ns_mov_b32 s{d+2}, 2752\ns_mov_b32 s{d+3}, 0x20000")
    def others():
        a(f"global_load_short_d16_hi v{vXc}, v{vS}, s[12:13]")
        a(f"global_load_short_d16_hi v{vXe}, v{vS+1}, s[12:13]")
        a(f"global_load_short_d16_hi v{vB2}, v{vMB}, s[22:23]")
        for (r, d) in ((W1, 44), (B1_, 48), (W2, 52)):
            for q in range(3):
                a(f"buffer_load_dwordx4 v[{r+4*q}:{r+4*q+3}], v{vMean}, s[{d}:{d+3}], 0 offen offset:{16*q}")
    a("s_mov_b32 s58, 0xffff0000")
    a("s_cmp_eq_u32 s34, 0\ns_cbranch_scc1 L_aux0a")
    others()
    a("s_waitcnt vmcnt(12)\ns_branch L_ln1")
    a("L_aux0a:")
    a("s_setprio 3")
    a("s_add_u32 s8, s8, s40\ns_addc_u32 s9, s9, 0\ns_movk_i32 s41, 0x2000")
    for t in range(16):
        a(f"global_load_dwordx4 v[{WQ+4*t}:{WQ+4*t+3}], v{vRS}, s[8:9] {ntf}")
        if t < 15: a(f"v_add_u32 v{vRS}, s41, v{vRS}")
    others()
    a("s_load_dword s37, s[28:29], 0")
    a(f"v_mov_b32 v{A0}, 0\nv_mov_b32 v{A0+1}, 0\nv_mov_b32 v{A0+2}, 0\nv_mov_b32 v{A0+3}, 0\nv_mov_b32 v{A0+4}, 0xff800000")
    a(f"v_cmp_eq_u32 vcc, 8, v0\nv_lshlrev_b32 v{A0+5}, 4, v0\ns_nop 0\nv_cndmask_b32 v{A0}, v{A0}, v{A0+4}, vcc")
    a(f"ds_write_b128 v{A0+5}, v[{A0}:{A0+3}] offset:{L_O}")
    a(f"v_and_b32 v{A0+6}, 1, v0\nv_cmp_eq_u32 vcc, 1, v{A0+6}\nv_mov_b32 v{A0+4}, 0x0c0c0100\nv_mov_b32 v{A0+5}, 0x01000c0c")
    a(f"v_cndmask_b32 v{A0+6}, v{A0+4}, v{A0+5}, vcc\nv_mov_b32 v{A0+4}, 0x0c0c0302\nv_mov_b32 v{A0+5}, 0x03020c0c\nv_cndmask_b32 v{A0+7}, v{A0+4}, v{A0+5}, vcc")
    a(f"v_mov_b32 v{A0+4}, 0x0c0c0c0c\ns_mov_b32 s60, 0x03030303\ns_mov_b32 s61, s60")
    for r in range(4):
        a(f"v_cndmask_b32 v{SEL+r}, v{A0+4}, v{A0+6}, s[60:61]\nv_cndmask_b32 v{SEL+4+r}, v{A0+4}, v{A0+7}, s[60:61]")
        if r < 3: a("s_lshl_b64 s[60:61], s[60:61], 2")
    a("s_waitcnt vmcnt(28)")
    a("L_ln1:")
    def reduce32(s, t):
        for ror in (8, 4, 2, 1):
            a(f"s_nop 1\nv_add_f32_dpp v{s}, v{s}, v{s} row_ror:{ror} {DPP}")
        a(f"v_mov_b32 v{t}, v{s}\ns_nop 1\nv_permlane16_swap_b32 v{s}, v{t}\nv_add_f32 v{s}, v{s}, v{t}")
    def pk(op, d, s0, s1, mods=""):
        a(f"v_pk_{op}_f32 v[{d}:{d+1}], v[{s0}:{s0+1}], v[{s1}:{s1+1}] {mods}")
    def ln_stats():
        for i in range(8): a(f"v_lshlrev_b32 v{F+2*i}, 16, v{X+i}\nv_and_b32 v{F+2*i+1}, s58, v{X+i}")
        for i in range(4): pk("add", T + 2 * i, F + 4 * i, F + 4 * i + 2)
        pk("add", T, T, T + 2); pk("add", T + 4, T + 4, T + 6); pk("add", T, T, T + 4)
        a(f"v_add_f32 v{vS}, v{T}, v{T+1}")
        reduce32(vS, T)
        a(f"v_mul_f32 v{vMean}, 0x3b000000, v{vS}")
        for i in range(8):
            pk("add", T + 2 * (i & 1), F + 2 * i, vMean, "op_sel_hi:[1,0] neg_lo:[0,1] neg_hi:[0,1]")
            if i == 0: pk("mul", T + 4, T, T)
            else: a(f"v_pk_fma_f32 v[{T+4}:{T+5}], v[{T+2*(i&1)}:{T+2*(i&1)+1}], v[{T+2*(i&1)}:{T+2*(i&1)+1}], v[{T+4}:{T+5}]")
        a(f"v_add_f32 v{vS}, v{T+4}, v{T+5}")
        reduce32(vS, T)
        a(f"v_mul_f32 v{vS}, 0x3b000000, v{vS}\nv_cvt_pk_bf16_f32 v{T}, v{vMean}, v{vS}\nv_lshlrev_b32 v{vMB}, 16, v{T}\nv_and_b32 v{vS}, s58, v{T}")
        a(f"v_add_f32 v{vS}, {hex(f2u(1e-5))}, v{vS}\nv_cvt_pk_bf16_f32 v{T}, v{vS}, v{vS}\nv_and_b32 v{vS}, s58, v{T}")
        a(f"v_sqrt_f32 v{vS}, v{vS}\ns_nop 0\nv_cvt_pk_bf16_f32 v{T}, v{vS}, v{vS}\nv_and_b32 v{vS}, s58, v{T}\nv_rcp_f32 v{vRS}, v{vS}\ns_nop 0")
    ln_stats()
    for i in range(8):
        t = T + 2 * (i & 3)
        pk("add", t, F + 2 * i, vMB, "op_sel_hi:[1,0] neg_lo:[0,1] neg_hi:[0,1]")
        a(f"v_cvt_pk_bf16_f32 v{t}, v{t}, v{t+1}\nv_and_b32 v{t+1}, s58, v{t}\nv_lshlrev_b32 v{t}, 16, v{t}")
        pk("mul", t, t, vRS, "op_sel_hi:[1,0]")
        a(f"v_cvt_pk_bf16_f32 v{X+i}, v{t}, v{t+1}")
    a(f"v_mov_b32 v{vMB1}, v{vMB}\nv_mov_b32 v{vRS1}, v{vRS}")
    stamp(2)
    a("s_cmp_eq_u32 s34, 0\ns_cbranch_scc0 L_ln2w")
    a(f"ds_write_b128 v{vL}, v[{X}:{X+3}] offset:{L_XN}\nds_write_b128 v{vL}, v[{X+4}:{X+7}] offset:{L_XN+16}")
    a(f"v_and_b32 v{T}, 8, v0\nv_lshlrev_b32 v{T}, 7, v{T}\nv_and_b32 v{T+1}, 48, v0\nv_lshl_or_b32 v{T}, v{T+1}, 1, v{T}\ns_lshl_b32 s36, s42, 7\nv_add_u32 v{T}, s36, v{T}")
    a("s_waitcnt lgkmcnt(0)")
    a(f"ds_read_b128 v[{F}:{F+3}], v{T} offset:{L_XN}\nds_read_b128 v[{F+4}:{F+7}], v{T} offset:{L_XN+16}")
    a(f"s_add_u32 s37, s37, 0x01010101\ns_xor_b32 s43, s37, 0xa9533c00\nv_mov_b32 v7, s43")
    a("s_mov_b32 s62, 0x07060500\ns_mov_b32 s63, 0x07060501\ns_mov_b32 s64, 0x07060502\ns_mov_b32 s65, 0x07060503")
    a("s_mov_b32 s66, 0x0c0c0400\ns_mov_b32 s67, 0x04000c0c")
    a(f"s_lshl_b32 s36, s30, 13\ns_add_u32 s36, s36, {QX}\ns_add_u32 s54, s28, s36\ns_addc_u32 s55, s29, 0")
    a(f"v_lshlrev_b32 v{T+2}, 4, v0\ns_lshl_b32 s36, s42, 10\nv_add_u32 v{T+2}, s36, v{T+2}")
    a(f"v_and_b32 v{T+3}, 31, v0\nv_lshlrev_b32 v{T+3}, 4, v{T+3}\nv_and_b32 v{T+4}, 32, v0\nv_lshl_or_b32 v{T+3}, v{T+4}, 5, v{T+3}")
    a(f"s_lshl_b32 s36, s32, 9\ns_add_u32 s36, s36, 4096\nv_add_u32 v{vAcc+2}, s36, v{T+3}")
    a("s_waitcnt lgkmcnt(0)")
    DQ = F + 8
    def buildA(t):
        for r in range(4): a(f"v_perm_b32 v{A0+4*(t&1)+r}, v{F+(t>>1)}, v{F+(t>>1)}, v{SEL+4*(t&1)+r}")
    buildA(0)
    for t in range(16):
        if t < 15: buildA(t + 1)
        else: a("s_nop 0")
        a(f"s_waitcnt vmcnt({12 + 15 - t})")
        c = "0" if t == 0 else f"v[{DQ}:{DQ+3}]"
        a(f"v_mfma_f32_16x16x32_bf16 v[{DQ}:{DQ+3}], v[{A0+4*(t&1)}:{A0+4*(t&1)+3}], v[{WQ+4*t}:{WQ+4*t+3}], {c}")
    a("s_nop 7")
    for k in range(4): a(f"v_perm_b32 v{DQ+k}, v{DQ+k}, v7, s{62+k}")
    a(f"global_store_dwordx4 v{T+2}, v[{DQ}:{DQ+3}], s[54:55] {stf}")
    stamp(3)
    a("s_waitcnt vmcnt(1)\ns_branch L_ln2")
    a("L_ln2w:\ns_waitcnt vmcnt(0)")
    a("L_ln2:")
    ln_stats()
    def rnd(v): a(f"v_cvt_pk_bf16_f32 v{v}, v{v}, v{v}\nv_and_b32 v{v}, s58, v{v}")
    a(f"v_sub_f32 v{vXc}, v{vXc}, v{vMB1}"); rnd(vXc)
    a(f"v_mul_f32 v{vXc}, v{vXc}, v{vRS1}"); rnd(vXc)
    a(f"v_sub_f32 v{vXc}, v{vXc}, v{vMB}"); rnd(vXc)
    a(f"v_mul_f32 v{vXc}, v{vXc}, v{vRS}"); rnd(vXc)
    c0 = -2.0 * (2.0 / 3.141592653589793) ** 0.5 * LOG2E
    a(f"s_lshl_b32 s36, s32, 5\ns_mov_b32 s60, {hex(f2u(c0 * 0.044715))}\ns_mov_b32 s61, {hex(f2u(c0))}\nv_mov_b32 v{vAcc}, 0")
    a(f"v_readlane_b32 s56, v{vXc}, s36\ns_nop 1")
    GQ = WQ
    def qpoll():
        for k in range(4): a(f"global_load_dwordx4 v[{GQ+4*k}:{GQ+4*k+3}], v{vAcc+2}, s[54:55] offset:{-4096 + 2048*k} {ldf}")
    for p in range(12):
        if p == pollpair:
            a("s_cmp_eq_u32 s34, 0\ns_cbranch_scc0 L_nopoll")
            qpoll()
            a("L_nopoll:")
        t = F + 4 * (p & 3); u = t + 2
        a(f"v_lshlrev_b32 v{t}, 16, v{W1+p}\nv_and_b32 v{t+1}, s58, v{W1+p}")
        a(f"v_pk_mul_f32 v[{t}:{t+1}], v[{t}:{t+1}], s[56:57] op_sel_hi:[1,0]")
        a(f"v_lshlrev_b32 v{u}, 16, v{B1_+p}\nv_and_b32 v{u+1}, s58, v{B1_+p}")
        a(f"v_cvt_pk_bf16_f32 v{t}, v{t}, v{t+1}\nv_and_b32 v{t+1}, s58, v{t}\nv_lshlrev_b32 v{t}, 16, v{t}")
        pk("add", t, t, u)
        a(f"v_cvt_pk_bf16_f32 v{t}, v{t}, v{t+1}\nv_and_b32 v{t+1}, s58, v{t}\nv_lshlrev_b32 v{t}, 16, v{t}")
        pk("mul", u, t, t)
        a(f"v_pk_fma_f32 v[{u}:{u+1}], v[{u}:{u+1}], s[60:61], s[60:61] op_sel:[0,0,1] op_sel_hi:[1,0,1]")
        pk("mul", u, u, t)
        a(f"v_exp_f32 v{u}, v{u}\nv_exp_f32 v{u+1}, v{u+1}\ns_nop 0")
        a(f"v_pk_add_f32 v[{u}:{u+1}], v[{u}:{u+1}], 1.0 op_sel_hi:[1,0]")
        a(f"v_rcp_f32 v{u}, v{u}\nv_rcp_f32 v{u+1}, v{u+1}\ns_nop 0")
        pk("mul", t, t, u)
        a(f"v_cvt_pk_bf16_f32 v{t}, v{t}, v{t+1}")
        a(f"v_dot2c_f32_bf16 v{vAcc}, v{t}, v{W2+p}")
    a("s_nop 2")
    reduce32(vAcc, T)
    a(f"v_mov_b32 v{T}, v{vAcc}\ns_nop 1\nv_permlane32_swap_b32 v{vAcc}, v{T}\nv_add_f32 v{vAcc}, v{vAcc}, v{T}")
    rnd(vAcc)
    a(f"v_add_f32 v{vAcc}, v{vAcc}, v{vB2}"); rnd(vAcc)
    a(f"v_mul_f32 v{T}, {hex(f2u(-LOG2E))}, v{vAcc}\nv_exp_f32 v{T}, v{T}\ns_nop 0\nv_add_f32 v{T}, 1.0, v{T}\nv_rcp_f32 v{T}, v{T}\ns_nop 0\nv_mul_f32 v{vAcc}, v{vAcc}, v{T}")
    rnd(vAcc)
    a(f"s_lshl_b32 s36, s34, 2\nv_mov_b32 v{T}, s36\ns_mov_b64 exec, 1\nds_write_b32 v{T}, v{vAcc} offset:{L_G}\ns_mov_b64 exec, -1")
    stamp(4)
    a("s_cmp_eq_u32 s34, 0\ns_cbranch_scc1 L_aux0b")
    a("s_waitcnt lgkmcnt(0)")
    dump_stamps(8)
    a("s_endpgm")
    a("L_aux0b:")
    a(f"s_mov_b32 s59, {spin}")
    if pollpair >= 12: qpoll()
    a("L_qchk:\ns_waitcnt vmcnt(0)")
    for k in range(4): chk(T + k, GQ + 4 * k, T + 4)
    a(f"v_cmp_ne_u32 vcc, s43, v{T}\nv_cmp_ne_u32 s[38:39], s43, v{T+1}\ns_or_b64 vcc, vcc, s[38:39]")
    a(f"v_cmp_ne_u32 s[38:39], s43, v{T+2}\ns_or_b64 vcc, vcc, s[38:39]\nv_cmp_ne_u32 s[38:39], s43, v{T+3}\ns_or_b64 vcc, vcc, s[38:39]")
    a("s_cbranch_vccz L_qgot\ns_sub_u32 s59, s59, 1\ns_cbranch_scc1 L_qgot")
    qpoll()
    a("s_branch L_qchk")
    a("L_qgot:")
    for k in (0, 2): pk("add", GQ + k, GQ + k, GQ + 4 + k); pk("add", GQ + 8 + k, GQ + 8 + k, GQ + 12 + k)
    for k in (0, 2): pk("add", GQ + k, GQ + k, GQ + 8 + k)
    a(f"v_and_b32 v{T}, 15, v0\nv_lshlrev_b32 v{T}, 4, v{T}\nv_bfe_u32 v{T+1}, v0, 4, 1\nv_lshl_or_b32 v{T}, v{T+1}, 3, v{T}\nv_lshrrev_b32 v{T+1}, 5, v0\nv_lshl_or_b32 v{T}, v{T+1}, 2, v{T}")
    a(f"v_permlane32_swap_b32 v{GQ}, v{GQ+2}\nv_permlane32_swap_b32 v{GQ+1}, v{GQ+3}")
    pk("add", GQ, GQ, GQ + 2)
    a(f"v_cvt_pk_bf16_f32 v{GQ}, v{GQ}, v{GQ+1}\nds_write_b32 v{T}, v{GQ} offset:{L_Q}")
    a(f"v_lshlrev_b32 v{T+2}, 2, v0\nv_lshlrev_b32 v{T+3}, 4, v0")
    a(f"s_lshl2_add_u32 s36, s33, s31\ns_lshl_b32 s36, s36, 10\ns_add_u32 s36, s36, {OX}\ns_add_u32 s54, s28, s36\ns_addc_u32 s55, s29, 0")
    a(f"s_lshr_b32 s36, s35, 3\ns_lshl_b32 s36, s36, 14\ns_and_b32 s38, s35, 7\ns_lshl4_add_u32 s36, s38, s36\ns_lshl_b32 s38, s32, 18\ns_add_u32 s36, s36, s38")
    a(f"s_add_u32 s36, s36, {YX}\ns_add_u32 s56, s28, s36\ns_addc_u32 s57, s29, 0")
    a(f"v_lshlrev_b32 v{T+4}, 8, v0\nv_lshrrev_b32 v{T+5}, 4, v0\nv_lshlrev_b32 v{T+5}, 2, v{T+5}")
    a("s_waitcnt lgkmcnt(0)")
    stamp(5)
    a("s_barrier")
    a(f"ds_read_b32 v{vB2}, v{T+5} offset:{L_G}")
    a("s_barrier")
    a("s_mov_b32 s68, -1\ns_mov_b32 s69, 1\ns_mov_b64 exec, s[68:69]")
    a("s_barrier")
    P = F
    a(f"ds_read2_b32 v[{P}:{P+1}], v{T+2} offset0:{L_O//4} offset1:{L_O//4+64}")
    a(f"ds_read2_b32 v[{P+2}:{P+3}], v{T+2} offset0:{L_O//4+128} offset1:{L_O//4+192-0}" if L_O // 4 + 192 <= 255 else f"ds_read2st64_b32 v[{P+2}:{P+3}], v{T+2} offset0:{(L_O//4+128)//64} offset1:{(L_O//4+192)//64}")
    a("s_waitcnt lgkmcnt(0)")
    for k in range(4): a(f"v_perm_b32 v{P+k}, v{P+k}, v7, s{62+k}")
    a(f"global_store_dwordx4 v{T+3}, v[{P}:{P+3}], s[54:55] {stf}")
    a("s_mov_b64 exec, -1")
    stamp(6)
    a(f"s_mov_b32 s59, {spin}")
    a("s_barrier")
    a("L_ypoll:")
    Y = GQ
    a(f"global_load_dwordx4 v[{Y}:{Y+3}], v{T+4}, s[56:57] {ldf}\nglobal_load_dwordx4 v[{Y+4}:{Y+7}], v{T+4}, s[56:57] offset:128 {ldf}")
    a("s_waitcnt vmcnt(0)")
    chk(T, Y, T + 6); chk(T + 1, Y + 4, T + 7)
    a(f"v_cmp_ne_u32 vcc, s43, v{T}\nv_cmp_ne_u32 s[38:39], s43, v{T+1}\ns_or_b64 vcc, vcc, s[38:39]")
    a("s_cbranch_vccz L_ygot\ns_sub_u32 s59, s59, 1\ns_cbranch_scc0 L_ypoll")
    a("L_ygot:")
    stamp(7)
    pk("add", Y, Y, Y + 4); pk("add", Y + 2, Y + 2, Y + 6)
    a(f"s_mov_b32 s68, 0x00010001\ns_mov_b32 s69, s68")
    a(f"v_permlane32_swap_b32 v{Y}, v{Y+2}\nv_permlane32_swap_b32 v{Y+1}, v{Y+3}")
    pk("add", Y, Y, Y + 2)
    a(f"s_nop 1\nv_permlane16_swap_b32 v{Y}, v{Y+1}\nv_add_f32 v{Y}, v{Y}, v{Y+1}")
    for ror in (8, 4, 2, 1): a(f"s_nop 1\nv_add_f32_dpp v{Y}, v{Y}, v{Y} row_ror:{ror} {DPP}")
    rnd(Y)
    a(f"v_mul_f32 v{Y}, v{Y}, v{vB2}"); rnd(Y)
    a(f"v_add_f32 v{Y}, v{Y}, v{vXe}\nv_cvt_pk_bf16_f32 v{Y}, v{Y}, v{Y}")
    a(f"s_mov_b64 exec, s[68:69]\nglobal_store_short v{vS+1}, v{Y}, s[24:25]")
    a("s_cmp_eq_u32 s2, 0\ns_cbranch_scc0 L_fin")
    a(f"s_mov_b64 exec, 1\nv_mov_b32 v{T}, 0\nv_mov_b32 v{T+1}, s37\nglobal_store_dword v{T}, v{T+1}, s[28:29]")
    a("L_fin:")
    stamp(8)
    dump_stamps(9)
    a("s_endpgm")
    open(fname, "w").write(wrap(a.text(), 256, 768, 4096, 168, sgpr=96, extra_desc="  .amdhsa_float_denorm_mode_32 3\n"))

if __name__ == "__main__":
    gen("x0.s")
    gen("x0_st.s", stamps=True)
```

```python
import sys, struct, re
from asmlib import *
from padlib import sizes, is_inst

def f2u(x): return struct.unpack("<I", struct.pack("<f", x))[0]

QX, OX, YX, FAST = 0x10000, 0x60000, 0xA0000, 0x200000
L_Q, L_FLAG, L_TAG, L_G, L_ML, L_O, L_WQ = 0, 256, 260, 320, 384, 2048, 8192
L_Y = L_WQ
L_X = 6144
LOG2E = 1.4426950408889634
KN = NAME + "_kernel"

def gen(fname, win=lambda n: 4, stamps=False, ntf="nt", stf="sc0 sc1", ldf="sc0 sc1", spin=1 << 14,
        prefetch=True, fast="dual", qgap=8, ygap=4, mixprio=1, safemask=15, checks=None, opipe=False, ymask=True,
        owarm=2, ogap=2, ydelay=0, odelay=0, n0=4, nb=None, qbarpos=1, order="qsm", ywarm=0, mixlds=True, ypubw='s', qsafe='late', n1=4):
    a = Asm()
    NW = 12
    def stamp(i):
        if stamps: a(f"s_memrealtime s[{70+2*i}:{71+2*i}]")
    def dump_stamps(n):
        if not stamps: return
        a("s_waitcnt lgkmcnt(0)")
        a(f"s_mul_i32 s60, s2, {NW*128}\ns_lshl_b32 s61, s3, 1\ns_add_u32 s60, s60, s61\ns_add_u32 s60, s60, 0x8000000")
        a("s_add_u32 s60, s28, s60\ns_addc_u32 s61, s29, 0\ns_mov_b64 exec, 1\nv_mov_b32 v2, 0")
        for i in range(n):
            a(f"v_mov_b32 v4, s{70+2*i}\nv_mov_b32 v5, s{71+2*i}\nglobal_store_dwordx2 v2, v[4:5], s[60:61] offset:{8*i}\ns_nop 1")
    DPP = "row_mask:0xf bank_mask:0xf"
    l2e = hex(f2u(LOG2E))
    def pk(op, d, s0, s1, mods=""):
        a(f"v_pk_{op}_f32 v[{d}:{d+1}], v[{s0}:{s0+1}], v[{s1}:{s1+1}] {mods}")
    def rnd(v): a(f"v_cvt_pk_bf16_f32 v{v}, v{v}, v{v}\nv_and_b32 v{v}, s58, v{v}")
    def chk(gs, t, vtag):
        for i, g in enumerate(gs):
            a(f"v_perm_b32 v{t+2*i}, v{g+1}, v{g}, s66\nv_perm_b32 v{t+2*i+1}, v{g+3}, v{g+2}, s67")
        for i, g in enumerate(gs):
            a(f"v_bitop3_b32 v{t+2*i}, v{t+2*i}, v{t+2*i+1}, v{vtag} bitop3:0x56")
        if len(gs) == 4:
            a(f"v_or3_b32 v{t}, v{t}, v{t+2}, v{t+4}\nv_or_b32 v{t}, v{t}, v{t+6}")
        elif len(gs) == 2:
            a(f"v_or_b32 v{t}, v{t}, v{t+2}")
        a(f"v_cmp_ne_u32 vcc, 0, v{t}")
    def idx():
        a("s_and_b32 s30, s2, 31\ns_lshr_b32 s31, s2, 6\ns_bfe_u32 s32, s2, 0x10005")
        a("s_lshl2_add_u32 s35, s30, s31")
    def swapop(op, s, t, w):
        a(f"v_mov_b32 v{t}, v{s}\ns_nop 1\nv_permlane{w}_swap_b32 v{s}, v{t}\nv_{op}_f32 v{s}, v{s}, v{t}")

    K, V, WO, QM, D = 8, 40, 72, 88, 104
    MK = 112
    vKoff, vVoff, vT, vT2 = 1, 2, 3, 4
    vWOoff, vQa, vOa, vOG, vML, vY, vTag, vFl, vEx = 116, 117, 118, 119, 120, 121, 122, 123, 128
    TC = 124
    XS = 130
    loads = [("lds", 5, 10, 0), ("lds", 6, 10, 1024)]
    for t in range(8): loads.append((K + 4 * t, vKoff, 6, -4096 + (t >> 2) * 4096 + (t & 3) * 1024))
    for t in range(8): loads.append((V + 4 * t, vVoff, 8, -4096 + (t >> 2) * 4096 + (t & 3) * 256))
    for t in range(2): loads.append((WO + 4 * t, vWOoff, 12, t * 1024))
    S = {"issued": 0, "done": 0}
    def issue(wait=True):
        n = S["issued"]
        if wait and n >= win(n): need(n - win(n))
        r, vo, sb, imm = loads[n]
        if r == "lds": a(f"global_load_lds_dwordx4 v{vo}, s[{sb}:{sb+1}] offset:{imm} {ntf}")
        else: a(f"global_load_dwordx4 v[{r}:{r+3}], v{vo}, s[{sb}:{sb+1}] offset:{imm} {ntf}")
        S["issued"] += 1
    def need(n):
        if n < S["done"]: return
        a(f"s_waitcnt vmcnt({S['issued'] - n - 1})")
        S["done"] = n + 1

    stamp(0)
    a("s_load_dwordx16 s[4:19], s[0:1], 0")
    a("v_readfirstlane_b32 s3, v0")
    a("s_lshr_b32 s36, s2, 8\ns_cbranch_scc1 L_end")
    a("s_lshr_b32 s36, s3, 8\ns_cbranch_scc0 L_qm")
    a("s_lshr_b32 s42, s2, 5\ns_and_b32 s30, s2, 31\ns_add_u32 s41, s3, s30\ns_lshl_b32 s41, s41, 8")
    a("s_lshl3_add_u32 s40, s42, -1\ns_lshl_b32 s40, s40, 16\ns_add_u32 s40, s40, s41")
    a(f"v_and_b32 v{vT}, 48, v0\nv_lshlrev_b32 v5, 13, v{vT}\nv_and_b32 v{vT2}, 15, v0\nv_lshl_or_b32 v5, v{vT2}, 4, v5\nv_add_u32 v5, s40, v5")
    a("v_add_u32 v6, 0x1c00, v5\ns_lshl_b32 m0, s3, 5")
    a("s_and_b32 s33, s2, 63\ns_lshr_b32 s31, s2, 6\ns_lshl4_add_u32 s34, s33, s31\ns_lshl_b32 s34, s34, 9")
    a(f"s_add_u32 s34, s34, s3\ns_addk_i32 s34, {0xB9000 >> 7}")
    a(f"v_and_b32 v7, 3, v0\nv_lshlrev_b32 v{vKoff}, 4, v7\nv_and_b32 v7, 12, v0\nv_lshl_or_b32 v{vKoff}, v7, 6, v{vKoff}")
    a(f"v_lshl_or_b32 v{vKoff}, v{vT}, 2, v{vKoff}\nv_lshl_add_u32 v{vKoff}, s34, 7, v{vKoff}")
    a("s_waitcnt lgkmcnt(0)")
    for _ in range(n0): issue(False)
    a("s_branch L_s2")
    a("L_qm:\ns_cmp_eq_u32 s3, 0\ns_cbranch_scc1 L_q")
    if prefetch:
        a("s_getpc_b64 s[38:39]\nL_pc:")
        a(f"v_mul_u32_u24 v7, 33, v0\nglobal_load_ubyte v72, v7, s[38:39] offset:-3333")
    a("s_branch L_mix")

    def ln_stats(X, n, F, T, vS, vMean, vMB, vRS, red):
        for i in range(n): a(f"v_lshlrev_b32 v{F+2*i}, 16, v{X+i}\nv_and_b32 v{F+2*i+1}, s58, v{X+i}")
        for i in range(n // 2): pk("add", T + 2 * i, F + 4 * i, F + 4 * i + 2)
        if n == 8: pk("add", T, T, T + 2); pk("add", T + 4, T + 4, T + 6); pk("add", T, T, T + 4)
        else: pk("add", T, T, T + 2)
        a(f"v_add_f32 v{vS}, v{T}, v{T+1}")
        red(vS, T)
        a(f"v_mul_f32 v{vMean}, 0x3b000000, v{vS}")
        for i in range(n):
            pk("add", T + 2 * (i & 1), F + 2 * i, vMean, "op_sel_hi:[1,0] neg_lo:[0,1] neg_hi:[0,1]")
            if i == 0: pk("mul", T + 4, T, T)
            else: a(f"v_pk_fma_f32 v[{T+4}:{T+5}], v[{T+2*(i&1)}:{T+2*(i&1)+1}], v[{T+2*(i&1)}:{T+2*(i&1)+1}], v[{T+4}:{T+5}]")
        a(f"v_add_f32 v{vS}, v{T+4}, v{T+5}")
        red(vS, T)
        a(f"v_mul_f32 v{vS}, 0x3b000000, v{vS}\nv_cvt_pk_bf16_f32 v{T}, v{vMean}, v{vS}\nv_lshlrev_b32 v{vMB}, 16, v{T}\nv_and_b32 v{vS}, s58, v{T}")
        a(f"v_add_f32 v{vS}, {hex(f2u(1e-5))}, v{vS}\nv_cvt_pk_bf16_f32 v{T}, v{vS}, v{vS}\nv_and_b32 v{vS}, s58, v{T}")
        a(f"v_sqrt_f32 v{vS}, v{vS}\ns_nop 0\nv_cvt_pk_bf16_f32 v{T}, v{vS}, v{vS}\nv_and_b32 v{vS}, s58, v{T}\nv_rcp_f32 v{vRS}, v{vS}\ns_nop 0")
    def ln_apply(Fs, X, n, T, vMB, vRS):
        for i in range(n):
            t = T + 2 * (i & 3)
            pk("add", t, Fs + 2 * i, vMB, "op_sel_hi:[1,0] neg_lo:[0,1] neg_hi:[0,1]")
            a(f"v_cvt_pk_bf16_f32 v{t}, v{t}, v{t+1}\nv_and_b32 v{t+1}, s58, v{t}\nv_lshlrev_b32 v{t}, 16, v{t}")
            pk("mul", t, t, vRS, "op_sel_hi:[1,0]")
            a(f"v_cvt_pk_bf16_f32 v{X+i}, v{t}, v{t+1}")
    def redQ(s, t):
        for m in ("quad_perm:[1,0,3,2]", "quad_perm:[2,3,0,1]", "row_half_mirror"):
            a(f"s_nop 1\nv_add_f32_dpp v{s}, v{s}, v{s} {m} {DPP}")
        swapop("add", s, t, 16); swapop("add", s, t, 32)
    def red64(s, t):
        for ror in (8, 4, 2, 1):
            a(f"s_nop 1\nv_add_f32_dpp v{s}, v{s}, v{s} row_ror:{ror} {DPP}")
        swapop("add", s, t, 16); swapop("add", s, t, 32)

    X, XA, F, T, WQ = 8, 16, 24, 40, 48
    SEL, A0 = 112, 120
    vXe, vB2, vOut, vQg, vTg, vZ, vPo = 1, 2, 3, 4, 7, 136, 137
    vMean, vMB, vRS, vS = 128, 130, 132, 134
    a("L_q:")
    a(f"v_lshlrev_b32 v{vPo}, 4, v0\ns_movk_i32 m0, {L_X}\ns_waitcnt lgkmcnt(0)")
    a(f"global_load_lds_dwordx4 v{vPo}, s[4:5]\nglobal_load_lds_dwordx4 v{vPo}, s[4:5] offset:1024")
    if order[0] != "q": a("s_branch L_q1")
    a("L_q0:")
    a("@@Q")
    a("L_q1:")
    stamp(1)
    a("s_load_dwordx8 s[20:27], s[0:1], 64\ns_load_dwordx2 s[28:29], s[0:1], 96")
    a("s_setprio 3")
    a(f"v_and_b32 v{T}, 8, v0\nv_lshlrev_b32 v{T}, 7, v{T}\nv_and_b32 v{T+1}, 48, v0\nv_and_b32 v{T+2}, 7, v0")
    a(f"v_lshl_or_b32 v5, v{T+1}, 4, v{T}\nv_lshl_or_b32 v5, v{T+2}, 5, v5")
    a("s_lshr_b32 s42, s2, 5\ns_lshl_b32 s36, s42, 7")
    a(f"v_lshl_or_b32 v{vS}, v{T+1}, 1, v{T}\nv_add_u32 v{vS}, s36, v{vS}")
    a("s_waitcnt lgkmcnt(0)")
    a("s_load_dword s37, s[28:29], 0")
    a(f"v_mov_b32 v{vZ}, 0\nds_write_b32 v{vZ}, v{vZ} offset:{L_FLAG}")
    idx()
    a("s_lshl_b32 s36, s32, 10\ns_lshl3_add_u32 s36, s35, s36")
    a(f"v_lshrrev_b32 v{vOut}, 3, v{T+1}\nv_add_u32 v{vOut}, s36, v{vOut}\nv_mov_b32 v{vXe}, 0\nv_mov_b32 v{vB2}, 0")
    a(f"global_load_short_d16_hi v{vXe}, v{vOut}, s[4:5]\nglobal_load_short_d16_hi v{vB2}, v{vZ}, s[22:23]")
    a("s_mov_b32 s58, 0xffff0000")
    a(f"v_and_b32 v{A0+6}, 1, v0\nv_cmp_eq_u32 vcc, 1, v{A0+6}\nv_mov_b32 v{A0+4}, 0x0c0c0100\nv_mov_b32 v{A0+5}, 0x01000c0c")
    a(f"v_cndmask_b32 v{A0+6}, v{A0+4}, v{A0+5}, vcc\nv_mov_b32 v{A0+4}, 0x0c0c0302\nv_mov_b32 v{A0+5}, 0x03020c0c\nv_cndmask_b32 v{A0+7}, v{A0+4}, v{A0+5}, vcc")
    a(f"v_mov_b32 v{A0+4}, 0x0c0c0c0c\ns_mov_b32 s60, 0x03030303\ns_mov_b32 s61, s60")
    for r in range(4):
        a(f"v_cndmask_b32 v{SEL+r}, v{A0+4}, v{A0+6}, s[60:61]\nv_cndmask_b32 v{SEL+4+r}, v{A0+4}, v{A0+7}, s[60:61]")
        if r < 3: a("s_lshl_b64 s[60:61], s[60:61], 2")
    a("s_mov_b32 s62, 0x07060500\ns_mov_b32 s63, 0x07060501\ns_mov_b32 s64, 0x07060502\ns_mov_b32 s65, 0x07060503")
    a("s_mov_b32 s66, 0x0c0c0400\ns_mov_b32 s67, 0x04000c0c")
    a(f"s_lshl_b32 s40, s30, 13\ns_add_u32 s36, s40, {QX}\ns_add_u32 s54, s28, s36\ns_addc_u32 s55, s29, 0")
    a(f"s_add_u32 s60, s54, {FAST}\ns_addc_u32 s61, s55, 0")
    a(f"s_lshl_b32 s41, s42, 10\nv_add_u32 v6, s41, v{vPo}")
    a(f"v_and_b32 v{T+3}, 31, v0\nv_lshlrev_b32 v{T+3}, 4, v{T+3}\nv_and_b32 v{T+4}, 32, v0\nv_lshl_or_b32 v{T+3}, v{T+4}, 5, v{T+3}")
    a(f"s_lshl_b32 s36, s32, 9\ns_add_u32 s36, s36, 4096\nv_add_u32 v{vQg}, s36, v{T+3}")
    a("s_waitcnt lgkmcnt(0)")
    a(f"s_add_u32 s37, s37, 0x01010101\ns_xor_b32 s43, s37, 0xa9533c00\nv_mov_b32 v{vTg}, s43")
    a(f"ds_write_b32 v{vZ}, v{vTg} offset:{L_TAG}")
    def qbar():
        a("s_waitcnt lgkmcnt(0)\ns_barrier")
        stamp(4)
        for t in range(16): a(f"ds_read_b128 v[{WQ+4*t}:{WQ+4*t+3}], v{vPo} offset:{L_WQ + 1024*t}")
    if qbarpos == 0: qbar()
    a("s_waitcnt vmcnt(2)")
    a(f"ds_read_b128 v[{X}:{X+3}], v5 offset:{L_X}\nds_read_b128 v[{X+4}:{X+7}], v5 offset:{L_X+16}")
    a(f"ds_read_b128 v[{XA}:{XA+3}], v{vS} offset:{L_X}\nds_read_b128 v[{XA+4}:{XA+7}], v{vS} offset:{L_X+16}")
    stamp(9)
    a(f"s_waitcnt lgkmcnt({0 if stamps or qbarpos == 0 else 2})")
    ln_stats(X, 8, F, T, vS, vMean, vMB, vRS, redQ)
    if qbarpos == 1: qbar()
    if qbarpos == 2: a("s_waitcnt lgkmcnt(0)")
    for i in range(8): a(f"v_lshlrev_b32 v{F+2*i}, 16, v{XA+i}\nv_and_b32 v{F+2*i+1}, s58, v{XA+i}")
    ln_apply(F, XA, 8, T, vMB, vRS)
    if qbarpos == 2: qbar()
    stamp(2)
    DQ = F
    def buildA(t):
        for r in range(4): a(f"v_perm_b32 v{A0+4*(t&1)+r}, v{XA+(t>>1)}, v{XA+(t>>1)}, v{SEL+4*(t&1)+r}")
    buildA(0)
    for t in range(16):
        if t < 15: buildA(t + 1)
        else: a("s_nop 0")
        if not stamps or t == 0: a(f"s_waitcnt lgkmcnt({0 if stamps else 15 - t})")
        c = "0" if t == 0 else f"v[{DQ}:{DQ+3}]"
        a(f"v_mfma_f32_16x16x32_bf16 v[{DQ}:{DQ+3}], v[{A0+4*(t&1)}:{A0+4*(t&1)+3}], v[{WQ+4*t}:{WQ+4*t+3}], {c}")
    a(f"s_mov_b32 s59, {spin}\ns_nop 6")
    for k in range(4): a(f"v_perm_b32 v{DQ+k}, v{DQ+k}, v{vTg}, s{62+k}")
    if fast != "safe": a(f"global_store_dwordx4 v6, v[{DQ}:{DQ+3}], s[60:61]")
    if fast == "safe" or (fast == "dual" and qsafe == "early"): a(f"global_store_dwordx4 v6, v[{DQ}:{DQ+3}], s[54:55] {stf}")
    stamp(3)
    GA, GB = WQ, WQ + 16
    fb = 54 if fast == "safe" else 60
    def qpoll(G_, sb):
        for k in range(4): a(f"global_load_dwordx4 v[{G_+4*k}:{G_+4*k+3}], v{vQg}, s[{sb}:{sb+1}] offset:{-4096 + 2048*k} {ldf}")
    qpoll(GA, fb)
    a(f"s_add_u32 s36, s40, s41\ns_add_u32 s36, s36, {OX}\ns_add_u32 s44, s28, s36\ns_addc_u32 s45, s29, 0")
    a(f"s_add_u32 s46, s44, {FAST}\ns_addc_u32 s47, s45, 0")
    a(f"s_lshr_b32 s36, s35, 3\ns_lshl4_add_u32 s36, s32, s36\ns_lshl_b32 s36, s36, 12\ns_and_b32 s38, s35, 7\ns_lshl4_add_u32 s36, s38, s36")
    a(f"s_add_u32 s36, s36, {YX}\ns_add_u32 s56, s28, s36\ns_addc_u32 s57, s29, 0")
    if ypubw == "q": a(f"s_lshl_b32 s36, s42, 13\ns_lshl_b32 s38, s30, 7\ns_add_u32 s36, s36, s38\ns_add_u32 s36, s36, {YX}\ns_add_u32 s48, s28, s36\ns_addc_u32 s49, s29, 0")
    vLq, vLo, vYp, vYg, vLg, vLl, vOne, vLy = X, X + 1, X + 2, X + 3, X + 4, X + 5, X + 6, X + 7
    a(f"v_and_b32 v{vLq}, 15, v0\nv_lshlrev_b32 v{vLq}, 4, v{vLq}\nv_bfe_u32 v{T+1}, v0, 4, 1\nv_lshl_or_b32 v{vLq}, v{T+1}, 3, v{vLq}\nv_lshrrev_b32 v{T+2}, 5, v0\nv_lshl_or_b32 v{vLq}, v{T+2}, 2, v{vLq}")
    if ypubw == "q": a(f"v_and_b32 v{vYp}, 7, v0\nv_lshlrev_b32 v{vYp}, 4, v{vYp}\nv_lshl_or_b32 v{vYp}, v{T+1}, 16, v{vYp}\nv_and_b32 v{T+2}, 8, v0\nv_lshl_or_b32 v{vYp}, v{T+2}, 9, v{vYp}")
    a(f"v_and_b32 v{T+1}, 32, v0\nv_lshlrev_b32 v{vLo}, 6, v{T+1}\nv_and_b32 v{T+2}, 31, v0\nv_lshl_or_b32 v{vLy}, v{T+2}, 4, v{vLo}")
    a(f"v_and_b32 v{T+2}, 1, v0\nv_lshl_or_b32 v{vLo}, v{T+2}, 8, v{vLo}\nv_and_b32 v{T+2}, 30, v0\nv_lshl_or_b32 v{vLo}, v{T+2}, 2, v{vLo}\nv_add_u32 v{vLo}, {L_O}, v{vLo}")
    a(f"v_and_b32 v{vLl}, 3, v0\nv_lshl_or_b32 v{vLl}, v{vLl}, 3, v{T+1}")
    a(f"v_lshlrev_b32 v{vYg}, 7, v0\nv_lshrrev_b32 v{vLg}, 4, v0\nv_lshlrev_b32 v{vLg}, 2, v{vLg}\nv_mov_b32 v{vOne}, 1")
    if qgap: a(f"s_sleep {qgap}")
    a("L_qloop:")
    if fast == "dual":
        a(f"s_and_b32 s36, s59, 7\ns_cmp_eq_u32 s36, 1\ns_cselect_b32 s38, s54, s60\ns_cselect_b32 s39, s55, s61")
        if qsafe == "late":
            a(f"s_cbranch_scc0 L_qns\nglobal_store_dwordx4 v6, v[{DQ}:{DQ+3}], s[54:55] {stf}\nL_qns:")
        qpoll(GB, 38)
    else: qpoll(GB, fb)
    a("s_waitcnt vmcnt(4)")
    chk([GA + 4 * k for k in range(4)], T, vTg)
    a("s_cbranch_vccz L_qgotA")
    qpoll(GA, fb)
    a("s_waitcnt vmcnt(4)")
    chk([GB + 4 * k for k in range(4)], T, vTg)
    a("s_cbranch_vccz L_qgotB\ns_sub_u32 s59, s59, 1\ns_cbranch_scc0 L_qloop")
    R = F + 4
    a("L_qgotB:")
    for k in (0, 2): pk("add", R + k, GB + k, GB + 4 + k); pk("add", R + 4 + k, GB + 8 + k, GB + 12 + k)
    a("s_branch L_qsum")
    a("L_qgotA:")
    for k in (0, 2): pk("add", R + k, GA + k, GA + 4 + k); pk("add", R + 4 + k, GA + 8 + k, GA + 12 + k)
    a("L_qsum:")
    for k in (0, 2): pk("add", R + k, R + k, R + 4 + k)
    a(f"s_mov_b32 s68, -1\ns_mov_b32 s69, 1")
    a(f"v_permlane32_swap_b32 v{R}, v{R+2}\nv_permlane32_swap_b32 v{R+1}, v{R+3}")
    pk("add", R, R, R + 2)
    a(f"v_cvt_pk_bf16_f32 v{R}, v{R}, v{R+1}\nds_write_b32 v{vLq}, v{R} offset:{L_Q}")
    a(f"s_mov_b64 exec, 1\nds_write_b32 v{vZ}, v{vOne} offset:{L_FLAG}\ns_mov_b64 exec, -1")
    stamp(5)
    if fast == "dual" and qsafe == "late": a(f"global_store_dwordx4 v6, v[{DQ}:{DQ+3}], s[54:55] {stf}")
    if owarm:
        a(f"s_add_u32 s36, s40, {OX + FAST}\nv_add_u32 v{T+1}, s36, v{vYg}")
        a(f"global_load_dword v138, v{T+1}, s[28:29] {'sc0 sc1' if owarm == 2 else ''}")
    P, SL, ML, E_ = F, SEL, T + 4, T + 6
    a("s_barrier")
    a(f"ds_read_b64 v[{ML}:{ML+1}], v{vLl} offset:{L_ML}")
    for sl in range(4):
        a(f"ds_read2_b64 v[{SL+4*sl}:{SL+4*sl+3}], v{vLo} offset0:{(512*sl)//8} offset1:{(512*sl + 128)//8}")
    gp = T
    a(f"ds_read_b32 v{gp}, v{vLg} offset:{L_G}\nds_read_b32 v{gp+1}, v{vLg} offset:{L_G+16}\nds_read_b32 v{gp+2}, v{vLg} offset:{L_G+32}")
    UM, UL = P + 2, P + 3
    a("s_waitcnt lgkmcnt(7)")
    a(f"v_max_f32_dpp v{UM}, v{ML}, v{ML} quad_perm:[1,0,3,2] {DPP}\ns_nop 1\nv_max_f32_dpp v{UM}, v{UM}, v{UM} quad_perm:[2,3,0,1] {DPP}")
    swapop("max", UM, E_, 32)
    a(f"v_sub_f32 v{E_}, v{ML}, v{UM}\nv_mul_f32 v{E_}, {l2e}, v{E_}\nv_exp_f32 v{E_}, v{E_}\ns_waitcnt lgkmcnt(3)")
    a(f"v_mul_f32 v{UL}, v{ML+1}, v{E_}")
    AC = XA
    for sl in range(4):
        for k in range(4):
            op = "v_mul_f32_dpp" if sl == 0 else "v_fmac_f32_dpp"
            a(f"{op} v{AC+k}, v{E_}, v{SL+4*sl+k} quad_perm:[{sl},{sl},{sl},{sl}] {DPP}")
        if sl == 0: a(f"v_add_f32_dpp v{UL}, v{UL}, v{UL} quad_perm:[1,0,3,2] {DPP}")
        if sl == 1: a(f"v_add_f32_dpp v{UL}, v{UL}, v{UL} quad_perm:[2,3,0,1] {DPP}\nv_mov_b32 v{ML}, v{UL}")
        if sl == 2: a(f"v_permlane32_swap_b32 v{UL}, v{ML}\nv_add_f32 v{UL}, v{UL}, v{ML}")
    a("s_nop 1")
    a(f"v_permlane32_swap_b32 v{AC}, v{AC+2}\nv_permlane32_swap_b32 v{AC+1}, v{AC+3}")
    pk("add", P, AC, AC + 2)
    a("s_nop 1")
    a(f"v_permlane32_swap_b32 v{P}, v{P+2}\nv_permlane32_swap_b32 v{P+1}, v{P+3}")
    a("s_mov_b64 exec, s[68:69]")
    for k in range(4): a(f"v_perm_b32 v{P+k}, v{P+k}, v{vTg}, s{62+k}")
    if fast != "safe": a(f"global_store_dwordx4 v{vPo}, v[{P}:{P+3}], s[46:47]")
    if fast != "fastonly": a(f"global_store_dwordx4 v{vPo}, v[{P}:{P+3}], s[44:45] {stf}")
    a("s_mov_b64 exec, -1")
    stamp(6)
    a("s_waitcnt lgkmcnt(0)")
    a(f"v_add_f32 v{gp}, v{gp}, v{gp+1}\nv_add_f32 v{gp}, v{gp}, v{gp+2}")
    rnd(gp)
    a(f"v_add_f32 v{gp}, v{gp}, v{vB2}"); rnd(gp)
    a(f"v_mul_f32 v{gp+1}, {hex(f2u(-LOG2E))}, v{gp}\nv_exp_f32 v{gp+1}, v{gp+1}\ns_nop 0\nv_add_f32 v{gp+1}, 1.0, v{gp+1}\nv_rcp_f32 v{gp+1}, v{gp+1}\ns_nop 0\nv_mul_f32 v{vB2}, v{gp}, v{gp+1}")
    rnd(vB2)
    a(f"s_mov_b32 s59, {spin}\ns_mov_b32 s50, -1\ns_mov_b32 s51, 0\ns_mov_b32 s68, 0x00010001\ns_mov_b32 s69, s68")
    YA, YB = WQ + 32, WQ + 36
    def ypoll(Y_): a(f"global_load_dwordx4 v[{Y_}:{Y_+3}], v{vYg}, s[56:57] {ldf}")
    if ywarm:
        a("s_mov_b64 exec, s[50:51]"); ypoll(WQ + 40); a("s_mov_b64 exec, -1")
    def yreduce(SL, AC, P, vLy, vYp, vtag, sb):
        for k in range(4): a(f"ds_read_b128 v[{SL+4*k}:{SL+4*k+3}], v{vLy} offset:{L_Y + 512*k}")
        a("s_waitcnt lgkmcnt(2)")
        pk("add", AC, SL, SL + 4); pk("add", AC + 2, SL + 2, SL + 6)
        a("s_waitcnt lgkmcnt(0)")
        pk("add", SL + 8, SL + 8, SL + 12); pk("add", SL + 10, SL + 10, SL + 14)
        pk("add", AC, AC, SL + 8); pk("add", AC + 2, AC + 2, SL + 10)
        a("s_nop 1")
        a(f"v_permlane32_swap_b32 v{AC}, v{AC+2}\nv_permlane32_swap_b32 v{AC+1}, v{AC+3}")
        pk("add", P, AC, AC + 2)
        a("s_nop 1")
        a(f"v_permlane32_swap_b32 v{P}, v{P+2}\nv_permlane32_swap_b32 v{P+1}, v{P+3}")
        a("s_mov_b32 exec_hi, 0")
        for k in range(4): a(f"v_perm_b32 v{P+k}, v{P+k}, v{vtag}, s{62+k}")
        a(f"global_store_dwordx4 v{vYp}, v[{P}:{P+3}], s[{sb}:{sb+1}] {stf}")
        stamp(10)
    a("s_barrier")
    if ypubw == "q": yreduce(SL, AC, P, vLy, vYp, vTg, 48)
    else: a("s_mov_b64 exec, s[50:51]")
    if ydelay: a(f"s_sleep {ydelay}")
    ypoll(YA)
    Y = F + 4
    msk = "s_mov_b64 exec, vcc\n" if ymask else ""
    if ygap >= 0:
        if ygap: a(f"s_sleep {ygap}")
        a("L_yloop:")
        ypoll(YB)
        a("s_waitcnt vmcnt(1)")
        a(f"v_pk_mov_b32 v[{Y}:{Y+1}], v[{YA}:{YA+1}], v[{YA}:{YA+1}] op_sel:[0,1]\nv_pk_mov_b32 v[{Y+2}:{Y+3}], v[{YA+2}:{YA+3}], v[{YA+2}:{YA+3}] op_sel:[0,1]")
        chk([YA], T, vTg)
        a(f"s_cbranch_vccz L_ysum\n{msk}".strip())
        ypoll(YA)
        a("s_waitcnt vmcnt(1)")
        a(f"v_pk_mov_b32 v[{Y}:{Y+1}], v[{YB}:{YB+1}], v[{YB}:{YB+1}] op_sel:[0,1]\nv_pk_mov_b32 v[{Y+2}:{Y+3}], v[{YB+2}:{YB+3}], v[{YB+2}:{YB+3}] op_sel:[0,1]")
        chk([YB], T, vTg)
        a(f"s_cbranch_vccz L_ysum\n{msk}s_sub_u32 s59, s59, 1\ns_cbranch_scc0 L_yloop")
    else:
        Y = YA
        a("L_yloop:\ns_waitcnt vmcnt(0)")
        chk([YA], T, vTg)
        a(f"s_cbranch_vccz L_ysum\n{msk}s_sub_u32 s59, s59, 1\ns_cbranch_scc1 L_ysum")
        ypoll(YA)
        a("s_branch L_yloop")
    a("L_ysum:\ns_mov_b64 exec, -1")
    stamp(7)
    a(f"v_permlane32_swap_b32 v{Y}, v{Y+2}\nv_permlane32_swap_b32 v{Y+1}, v{Y+3}")
    a(f"s_nop 1\nv_permlane16_swap_b32 v{Y}, v{Y+1}\nv_add_f32 v{Y}, v{Y}, v{Y+1}")
    for ror in (8, 4, 2, 1): a(f"s_nop 1\nv_add_f32_dpp v{Y}, v{Y}, v{Y} row_ror:{ror} {DPP}")
    rnd(Y)
    a(f"v_mul_f32 v{Y}, v{Y}, v{vB2}"); rnd(Y)
    a(f"v_add_f32 v{Y}, v{Y}, v{vXe}\nv_cvt_pk_bf16_f32 v{Y}, v{Y}, v{Y}")
    a(f"s_mov_b64 exec, s[68:69]\nglobal_store_short v{vOut}, v{Y}, s[24:25]")
    a("s_cmp_eq_u32 s2, 0\ns_cbranch_scc0 L_fin")
    a(f"s_mov_b64 exec, 1\nv_mov_b32 v{T+1}, s37\nglobal_store_dword v{vZ}, v{T+1}, s[28:29]")
    a("L_fin:")
    stamp(8)
    dump_stamps(11)
    a("L_end:\ns_endpgm")

    a("@@S")
    a("L_s2:")
    while S["issued"] < n1: issue(False)
    stamp(1)
    a("s_load_dwordx2 s[28:29], s[0:1], 96")
    a(f"v_lshlrev_b32 v{vVoff}, 6, v{vT}\nv_lshl_or_b32 v{vVoff}, v{vT2}, 4, v{vVoff}\nv_lshl_add_u32 v{vVoff}, s34, 7, v{vVoff}")
    a("s_lshl1_add_u32 s36, s30, -1\ns_lshl_b32 s36, s36, 16\ns_lshl_b32 s38, s3, 8\ns_add_u32 s36, s36, s38\ns_lshl_b32 s38, s42, 7\ns_add_u32 s36, s36, s38")
    a(f"v_and_b32 v7, 56, v0\nv_lshlrev_b32 v{vWOoff}, 8, v7\nv_and_b32 v7, 7, v0\nv_lshl_or_b32 v{vWOoff}, v7, 4, v{vWOoff}\nv_add_u32 v{vWOoff}, s36, v{vWOoff}")
    a(f"v_lshlrev_b32 v{vY}, 5, v7\nv_and_b32 v7, 8, v0\nv_lshl_or_b32 v{vY}, v7, 5, v{vY}\nv_lshrrev_b32 v7, 1, v{vT}\nv_or_b32 v{vY}, v7, v{vY}\ns_lshl_b32 s36, s3, 3\nv_add_u32 v{vY}, s36, v{vY}")
    a("s_mov_b32 s40, 0x000f000f\ns_mov_b32 s41, s40\ns_lshl_b64 s[42:43], s[40:41], 4\ns_lshl_b64 s[44:45], s[40:41], 8\ns_lshl_b64 s[46:47], s[40:41], 12")
    a(f"v_and_b32 v7, 1, v0\nv_lshlrev_b32 v{vML}, 10, v7\nv_lshlrev_b32 v7, 4, v7\nv_mov_b32 v5, 0xffff\nv_lshlrev_b32 v5, v7, v5")
    for r in range(4): a(f"v_cndmask_b32 v{MK+r}, 0, v5, s[{40+2*r}:{41+2*r}]")
    for r in range(0, 16, 2): a(f"v_mov_b64 v[{QM+r}:{QM+r+1}], 0")
    a(f"v_lshlrev_b32 v{vQa}, 2, v{vT}\nv_and_b32 v7, 3, v0\nv_lshl_or_b32 v{vQa}, v7, 4, v{vQa}")
    a(f"v_lshlrev_b32 v{vOa}, 3, v0")
    a(f"v_and_b32 v7, 12, v0\nv_lshl_or_b32 v{vML}, v7, 9, v{vML}\nv_and_b32 v7, 0x3f0, v0\nv_add_u32 v{vOG}, v7, v{vML}")
    a(f"v_lshrrev_b32 v7, 6, v0\nv_lshlrev_b32 v7, 3, v7")
    a("s_mov_b32 s58, 0xffff0000\ns_mov_b32 s62, 0xcccccccc\ns_mov_b32 s63, s62")
    a("s_mov_b32 s66, 0x0c0c0400\ns_mov_b32 s67, 0x04000c0c")
    a(f"v_mov_b32 v6, 0\nv_mov_b32 v{vEx}, 1\ns_mov_b32 s48, {hex(f2u(128 ** -0.5))}\ns_mov_b32 s50, {l2e}\ns_mov_b32 s59, {spin}")
    sLy, sYp = 134, 135
    if ypubw == "s":
        a(f"v_and_b32 v{sYp}, 7, v0\nv_lshlrev_b32 v{sYp}, 4, v{sYp}\nv_and_b32 v5, 16, v0\nv_lshl_or_b32 v{sYp}, v5, 12, v{sYp}\nv_and_b32 v5, 8, v0\nv_lshl_or_b32 v{sYp}, v5, 9, v{sYp}")
        a(f"v_and_b32 v5, 32, v0\nv_lshlrev_b32 v{sLy}, 6, v5\nv_and_b32 v5, 31, v0\nv_lshl_or_b32 v{sLy}, v5, 4, v{sLy}")
        a(f"s_lshr_b32 s36, s2, 5\ns_lshl_b32 s36, s36, 13\ns_lshl_b32 s38, s30, 7\ns_add_u32 s36, s36, s38\ns_add_u32 s36, s36, {YX}\ns_waitcnt lgkmcnt(0)\ns_add_u32 s56, s28, s36\ns_addc_u32 s57, s29, 0")
    a(f"s_lshl_b32 s36, s30, 13\ns_add_u32 s36, s36, {OX}\ns_waitcnt lgkmcnt(0)\ns_add_u32 s54, s28, s36\ns_addc_u32 s55, s29, 0")
    a(f"s_add_u32 s60, s54, {FAST}\ns_addc_u32 s61, s55, 0")
    site = 0
    first2 = True
    bar_done = False
    def bar0():
        need(1)
        a("s_barrier")
        stamp(9)
    while S["issued"] < len(loads):
        n = S["issued"]
        if not bar_done and (n == nb if nb is not None else S["done"] >= 2):
            bar0(); bar_done = True
        will_done = max(S["done"], n - win(n) + 1)
        do = will_done >= 10 and (checks is None or n in checks)
        assert not do or bar_done
        if do: a(f"ds_read_b32 v{vFl}, v6 offset:{L_FLAG}")
        issue()
        if do:
            if first2: stamp(2); first2 = False
            a(f"s_waitcnt lgkmcnt(0)\nv_cmp_eq_u32 vcc, v{vFl}, v{vEx}\ns_cbranch_vccz L_skip{site}\ns_call_b64 s[14:15], L_qk\nL_skip{site}:")
            site += 1
    need(9)
    a(f"v_cmp_eq_u32 vcc, 1, v{vEx}\ns_cbranch_vccz L_pv")
    a(f"L_fspin:\nds_read_b32 v{vFl}, v6 offset:{L_FLAG}\ns_waitcnt lgkmcnt(0)\nv_cmp_eq_u32 vcc, 1, v{vFl}\ns_cbranch_vccnz L_fgot\ns_sub_u32 s59, s59, 1\ns_cbranch_scc0 L_fspin")
    a("L_fgot:\ns_call_b64 s[14:15], L_qk")
    a("L_pv:")
    O = QM
    for t in range(8):
        need(10 + t)
        c = "0" if t < 2 else f"v[{O+4*(t&1)}:{O+4*(t&1)+3}]"
        a(f"v_mfma_f32_16x16x32_bf16 v[{O+4*(t&1)}:{O+4*(t&1)+3}], v[{K+4*t}:{K+4*t+3}], v[{V+4*t}:{V+4*t+3}], {c}")
    a(f"s_mov_b32 s59, {spin}\ns_nop 6")
    pk("add", O, O, O + 4)
    a(f"ds_write_b64 v{vOa}, v[{O}:{O+1}] offset:{L_O - 2048}")
    a("s_waitcnt lgkmcnt(0)")
    stamp(5)
    a("s_barrier")
    G, M = V, V + 4
    if stamps:
        a("s_waitcnt vmcnt(0)")
        stamp(8)
    if odelay: a(f"s_sleep {odelay}")
    def osel():
        if fast == "dual":
            a(f"s_and_b32 s36, s59, {safemask}\ns_cmp_eq_u32 s36, 1\ns_cselect_b32 s38, s54, s60\ns_cselect_b32 s39, s55, s61")
            return 38
        return 54 if fast == "safe" else 60
    def opoll(g, ob):
        a(f"global_load_dwordx4 v[{g}:{g+3}], v{vOG}, s[{ob}:{ob+1}] offset:-256 {ldf}")
        a(f"global_load_dwordx4 v[{g+4}:{g+7}], v{vML}, s[{ob}:{ob+1}] offset:512 {ldf}")
    PD = V + 16
    def post1(g):
        m_, l_ = PD + 2, PD + 3
        a(f"v_and_b32 v{m_}, s58, v{g+4}\nv_cndmask_b32 v{PD}, v{g}, v{g+2}, s[62:63]\nv_cndmask_b32 v{PD+1}, v{g+1}, v{g+3}, s[62:63]")
        a(f"v_max_f32_dpp v{vT}, v{m_}, v{m_} row_ror:4 {DPP}\nv_mov_b32 v{l_}, v{g+5}")
    if opipe:
        G2 = V + 8
        opoll(G, 54 if fast == "safe" else 60)
        if ogap: a(f"s_sleep {ogap}")
        a("L_opoll:")
        opoll(G2, osel())
        a("s_waitcnt vmcnt(2)")
        chk([G, M], TC, vTag)
        a("s_cbranch_vccz L_ogot")
        opoll(G, 54 if fast == "safe" else 60)
        a("s_waitcnt vmcnt(2)")
        chk([G2, G2 + 4], TC, vTag)
        a("s_cbranch_vccz L_ogotB\ns_sub_u32 s59, s59, 1\ns_cbranch_scc0 L_opoll")
        a("L_ogotB:")
        post1(G2)
        a("s_branch L_opost")
        a("L_ogot:")
        post1(G)
        a("s_nop 0")
        a("L_opost:")
        stamp(6)
    else:
        a("L_opoll:")
        opoll(G, osel())
        a("s_waitcnt vmcnt(0)")
        chk([G, M], TC, vTag)
        a("s_cbranch_vccz L_ogot\ns_sub_u32 s59, s59, 1\ns_cbranch_scc0 L_opoll")
        a("L_ogot:")
        stamp(6)
        post1(G)
        a("s_nop 0")
    m_, l_ = PD + 2, PD + 3
    a(f"v_max_f32_dpp v{vT}, v{vT}, v{vT} row_ror:8 {DPP}")
    a(f"v_sub_f32 v{m_}, v{m_}, v{vT}\nv_mul_f32 v{m_}, s50, v{m_}\nv_exp_f32 v{m_}, v{m_}\ns_nop 0")
    a(f"v_mul_f32 v{l_}, v{l_}, v{m_}")
    a(f"v_pk_mul_f32 v[{PD}:{PD+1}], v[{PD}:{PD+1}], v[{m_}:{m_+1}] op_sel_hi:[1,0]\ns_nop 0")
    for ror in (4, 8):
        a(f"v_add_f32_dpp v{l_}, v{l_}, v{l_} row_ror:{ror} {DPP}")
        for r in range(2): a(f"v_add_f32_dpp v{PD+r}, v{PD+r}, v{PD+r} row_ror:{ror} {DPP}")
    a(f"v_rcp_f32 v{m_}, v{l_}\ns_nop 0")
    a(f"v_pk_mul_f32 v[{PD}:{PD+1}], v[{PD}:{PD+1}], v[{m_}:{m_+1}] op_sel_hi:[1,0]")
    for t in range(2): a(f"v_cvt_pk_bf16_f32 v{PD+t}, v{PD+t}, v{PD+t}")
    a("s_nop 0")
    seq = [(0, 0), (0, 1), (1, 0), (1, 1)]
    def mf(i):
        t, b = seq[i]
        c = "0" if t == 0 else f"v[{D+4*b}:{D+4*b+3}]"
        a(f"v_mfma_f32_16x16x32_bf16 v[{D+4*b}:{D+4*b+3}], v[{K+4*i}:{K+4*i+3}], v[{WO+4*t}:{WO+4*t+3}], {c}")
    for i, (t, b) in enumerate(seq):
        qp = "[0,0,2,2]" if b == 0 else "[1,1,3,3]"
        for r in range(4): a(f"v_and_b32_dpp v{K+4*i+r}, v{PD+t}, v{MK+r} quad_perm:{qp} {DPP}")
        if i >= 1: mf(i - 1)
    a("s_nop 0")
    mf(3)
    Z = PD
    a(f"s_nop 5\nv_add_f32_dpp v{Z}, v{D+2}, v{D} row_ror:8 row_mask:0xf bank_mask:0x3\nv_add_f32_dpp v{Z+1}, v{D+3}, v{D+1} row_ror:8 row_mask:0xf bank_mask:0x3\ns_nop 0")
    a(f"v_add_f32_dpp v{Z}, v{D+4}, v{D+6} row_ror:8 row_mask:0xf bank_mask:0xc\nv_add_f32_dpp v{Z+1}, v{D+5}, v{D+7} row_ror:8 row_mask:0xf bank_mask:0xc")
    a(f"ds_write_b64 v{vY}, v[{Z}:{Z+1}] offset:{L_Y - 2048}\ns_waitcnt lgkmcnt(0)")
    stamp(7)
    if ypubw == "s":
        a("s_mov_b32 s62, 0x07060500\ns_mov_b32 s63, 0x07060501\ns_mov_b32 s64, 0x07060502\ns_mov_b32 s65, 0x07060503\ns_cmp_lg_u32 s3, 256")
    a("s_barrier")
    if ypubw == "s":
        a("s_cbranch_scc1 L_send")
        yreduce(K, K + 16, K + 20, sLy, sYp, vTag, 56)
        a("L_send:")
    dump_stamps(11)
    a("s_endpgm")
    a("L_qk:")
    stamp(3)
    for m in range(4):
        a(f"s_mov_b64 exec, s[{40+2*m}:{41+2*m}]\nds_read_b128 v[{QM+4*m}:{QM+4*m+3}], v{vQa} offset:{L_Q}")
    a("s_mov_b64 exec, -1")
    a(f"ds_read_b32 v{vTag}, v6 offset:{L_TAG}\nv_mov_b32 v{vEx}, 2")
    for m in range(4):
        a(f"s_waitcnt lgkmcnt({0 if stamps else 4-m})")
        for u in range(2):
            c = "0" if m == 0 else f"v[{D+4*u}:{D+4*u+3}]"
            a(f"v_mfma_f32_16x16x32_bf16 v[{D+4*u}:{D+4*u+3}], v[{QM+4*m}:{QM+4*m+3}], v[{K+16*u+4*m}:{K+16*u+4*m+3}], {c}")
    a("s_nop 6")
    x0, x1 = XS, XS + 1
    for r in range(4):
        for u in range(2):
            qp = f"quad_perm:[{r},{r},{r},{r}]"
            if r == 0: a(f"v_mov_b32_dpp v{XS+u}, v{D+4*u} {qp} {DPP}")
            else: a(f"v_add_f32_dpp v{XS+u}, v{D+4*u+r}, v{XS+u} {qp} {DPP}")
    a(f"v_cvt_pk_bf16_f32 v{vT}, v{x0}, v{x1}\nv_lshlrev_b32 v{x0}, 16, v{vT}\nv_and_b32 v{x1}, s58, v{vT}")
    a(f"v_pk_mul_f32 v[{XS}:{XS+1}], v[{XS}:{XS+1}], s[48:49] op_sel_hi:[1,0]")
    a(f"v_cvt_pk_bf16_f32 v{vT}, v{x0}, v{x1}\nv_lshlrev_b32 v{x0}, 16, v{vT}\nv_and_b32 v{x1}, s58, v{vT}")
    mm, ll = XS + 2, XS + 3
    a(f"v_max_f32 v{mm}, v{x0}, v{x1}\ns_nop 1")
    a(f"v_max_f32_dpp v{mm}, v{mm}, v{mm} row_ror:4 {DPP}\ns_nop 1\nv_max_f32_dpp v{mm}, v{mm}, v{mm} row_ror:8 {DPP}")
    swapop("max", mm, vT2, 16); swapop("max", mm, vT2, 32)
    pk("add", XS, XS, mm, "op_sel_hi:[1,0] neg_lo:[0,1] neg_hi:[0,1]")
    a(f"v_pk_mul_f32 v[{XS}:{XS+1}], v[{XS}:{XS+1}], s[50:51] op_sel_hi:[1,0]")
    a(f"v_exp_f32 v{x0}, v{x0}\nv_exp_f32 v{x1}, v{x1}\ns_nop 0")
    a(f"v_add_f32 v{ll}, v{x0}, v{x1}\nv_cvt_pk_bf16_f32 v{x0}, v{x0}, v{x0}\nv_cvt_pk_bf16_f32 v{x1}, v{x1}, v{x1}")
    a(f"v_add_f32_dpp v{ll}, v{ll}, v{ll} row_ror:4 {DPP}")
    for t in range(8):
        u, aa = t >> 2, t & 3
        for r in range(4):
            a(f"v_and_b32_dpp v{K+4*t+r}, v{XS+u}, v{MK+r} row_newbcast:{4*aa} {DPP}")
        if t == 0: a(f"v_add_f32_dpp v{ll}, v{ll}, v{ll} row_ror:8 {DPP}\nv_mov_b32 v{vT2}, v{ll}")
        if t == 1: a(f"v_permlane16_swap_b32 v{ll}, v{vT2}\nv_add_f32 v{ll}, v{ll}, v{vT2}\nv_mov_b32 v{vT2}, v{ll}")
        if t == 2: a(f"v_permlane32_swap_b32 v{ll}, v{vT2}\nv_add_f32 v{ll}, v{ll}, v{vT2}\ns_mov_b64 exec, 1\nds_write_b64 v7, v[{mm}:{ll}] offset:{L_ML - 32}\ns_mov_b64 exec, -1")
    stamp(4)
    a("s_setpc_b64 s[14:15]")

    X, F, T = 8, 12, 20
    W1, B1_, W2 = 28, 32, 36
    W1f, B1f = 40, 48
    C = 56
    ACC = 72
    vXc, vWo = 1, 4
    vMean, vMB, vRS, vS = 76, 78, 80, 82
    a("@@M")
    a("L_mix:")
    a("s_load_dwordx2 s[52:53], s[0:1], 64")
    if stamps: a("s_load_dwordx2 s[28:29], s[0:1], 96")
    if mixprio: a(f"s_setprio {mixprio}")
    idx()
    a(f"v_subrev_u32 v{vWo}, 64, v0\nv_lshlrev_b32 v{vWo}, 4, v{vWo}")
    a(f"v_and_b32 v0, 63, v0\ns_lshl_b32 s36, s32, 10\nv_lshlrev_b32 v5, 4, v0\nv_add_u32 v5, s36, v5")
    a(f"s_lshl3_add_u32 s36, s35, s36\nv_and_b32 v6, 3, v0\nv_lshlrev_b32 v6, 1, v6\nv_add_u32 v6, s36, v6\nv_mov_b32 v{vXc}, 0")
    a("s_mov_b32 s46, 2752\ns_mov_b32 s47, 0x20000\ns_mov_b32 s50, s46\ns_mov_b32 s51, s47\ns_mov_b32 s54, s46\ns_mov_b32 s55, s47")
    a("s_mov_b32 s58, 0xffff0000")
    a("s_waitcnt lgkmcnt(0)")
    stamp(1)
    if not mixlds: a(f"global_load_dwordx4 v[{X}:{X+3}], v5, s[4:5]\nglobal_load_short_d16_hi v{vXc}, v6, s[4:5]")
    a("s_mov_b64 s[44:45], s[16:17]\ns_mov_b64 s[48:49], s[18:19]")
    for (r, d) in ((W1, 44), (B1_, 48), (W2, 52)):
        a(f"buffer_load_dwordx4 v[{r}:{r+3}], v{vWo}, s[{d}:{d+3}], 0 offen")
    c0 = -2.0 * (2.0 / 3.141592653589793) ** 0.5 * LOG2E
    a(f"s_mov_b32 s60, {hex(f2u(c0 * 0.044715))}\ns_mov_b32 s61, {hex(f2u(c0))}")
    a("s_barrier")
    if mixlds: a(f"ds_read_b128 v[{X}:{X+3}], v5 offset:{L_X}\nds_read_u16_d16_hi v{vXc}, v6 offset:{L_X}\ns_waitcnt lgkmcnt(0)")
    else: a("s_waitcnt vmcnt(4)")
    stamp(9)
    ln_stats(X, 4, F, T, vS, vMean, vMB, vRS, red64)
    ln_apply(F, X, 4, T, vMB, vRS)
    if not mixlds: a("s_waitcnt vmcnt(3)")
    a(f"v_sub_f32 v{vXc}, v{vXc}, v{vMB}"); rnd(vXc)
    a(f"v_mul_f32 v{vXc}, v{vXc}, v{vRS}"); rnd(vXc)
    stamp(2)
    ln_stats(X, 4, F, T, vS, vMean, vMB, vRS, red64)
    a(f"v_sub_f32 v{vXc}, v{vXc}, v{vMB}"); rnd(vXc)
    a(f"v_mul_f32 v{vXc}, v{vXc}, v{vRS}"); rnd(vXc)
    a("s_waitcnt vmcnt(0)")
    for c in range(4): a(f"v_readlane_b32 s{62+c}, v{vXc}, {c}")
    for p in range(4):
        a(f"v_lshlrev_b32 v{W1f+2*p}, 16, v{W1+p}\nv_and_b32 v{W1f+2*p+1}, s58, v{W1+p}")
        a(f"v_lshlrev_b32 v{B1f+2*p}, 16, v{B1_+p}\nv_and_b32 v{B1f+2*p+1}, s58, v{B1_+p}")
    for c in range(4): a(f"v_mov_b32 v{ACC+c}, 0")
    stamp(3)
    def chain(p, c, t):
        u = t + 2
        sp = 62 + (c & 2)
        osel_ = "op_sel_hi:[1,0]" if (c & 1) == 0 else "op_sel:[0,1] op_sel_hi:[1,1]"
        return [
            f"v_pk_mul_f32 v[{t}:{t+1}], v[{W1f+2*p}:{W1f+2*p+1}], s[{sp}:{sp+1}] {osel_}",
            f"v_cvt_pk_bf16_f32 v{t}, v{t}, v{t+1}", f"v_and_b32 v{t+1}, s58, v{t}", f"v_lshlrev_b32 v{t}, 16, v{t}",
            f"v_pk_add_f32 v[{t}:{t+1}], v[{t}:{t+1}], v[{B1f+2*p}:{B1f+2*p+1}]",
            f"v_cvt_pk_bf16_f32 v{t}, v{t}, v{t+1}", f"v_and_b32 v{t+1}, s58, v{t}", f"v_lshlrev_b32 v{t}, 16, v{t}",
            f"v_pk_mul_f32 v[{u}:{u+1}], v[{t}:{t+1}], v[{t}:{t+1}]",
            f"v_pk_fma_f32 v[{u}:{u+1}], v[{u}:{u+1}], s[60:61], s[60:61] op_sel:[0,0,1] op_sel_hi:[1,0,1]",
            f"v_pk_mul_f32 v[{u}:{u+1}], v[{u}:{u+1}], v[{t}:{t+1}]",
            f"v_exp_f32 v{u}, v{u}", f"v_exp_f32 v{u+1}, v{u+1}",
            f"v_pk_add_f32 v[{u}:{u+1}], v[{u}:{u+1}], 1.0 op_sel_hi:[1,0]",
            f"v_rcp_f32 v{u}, v{u}", f"v_rcp_f32 v{u+1}, v{u+1}",
            f"v_pk_mul_f32 v[{t}:{t+1}], v[{t}:{t+1}], v[{u}:{u+1}]",
            f"v_cvt_pk_bf16_f32 v{t}, v{t}, v{t+1}",
            f"v_dot2c_f32_bf16 v{ACC+c}, v{t}, v{W2+p}"]
    a("s_mov_b32 s36, 0")
    a("L_mloop:")
    for p in range(4):
        l0, l1 = chain(p, 0, C), chain(p, 1, C + 4)
        for i0, i1 in zip(l0, l1): a(i0); a(i1)
    a("s_cmp_lg_u32 s36, 0\ns_cbranch_scc1 L_mdone")
    a(f"s_mov_b32 s36, 1\ns_mov_b64 s[62:63], s[64:65]\nv_mov_b32 v{ACC+2}, v{ACC}\nv_mov_b32 v{ACC+3}, v{ACC+1}\nv_mov_b32 v{ACC}, 0\nv_mov_b32 v{ACC+1}, 0\ns_branch L_mloop")
    a("L_mdone:")
    a(f"s_lshr_b32 s36, s3, 2\ns_sub_u32 s36, s36, 16\nv_lshrrev_b32 v{T}, 2, v0\nv_add_u32 v{T}, s36, v{T}")
    a(f"v_permlane32_swap_b32 v{ACC+2}, v{ACC}\nv_permlane32_swap_b32 v{ACC+3}, v{ACC+1}")
    pk("add", ACC, ACC, ACC + 2)
    a(f"s_nop 1\nv_permlane16_swap_b32 v{ACC}, v{ACC+1}\nv_add_f32 v{ACC}, v{ACC}, v{ACC+1}")
    for ror in (8, 4, 2, 1): a(f"s_nop 1\nv_add_f32_dpp v{ACC}, v{ACC}, v{ACC} row_ror:{ror} {DPP}")
    a(f"s_mov_b32 s68, 0x00010001\ns_mov_b32 s69, s68\ns_mov_b64 exec, s[68:69]\nds_write_b32 v{T}, v{ACC} offset:{L_G}")
    a("s_waitcnt lgkmcnt(0)")
    stamp(4)
    dump_stamps(11)
    a("s_endpgm")
    txt = a.text()
    e, r = txt.split("    @@Q\n"); q_, r = r.split("    @@S\n"); s_, m_ = r.split("    @@M\n")
    parts = {"q": q_, "s": s_, "m": m_}
    txt = e + "".join(parts[c] for c in order)
    lines = txt.rstrip("\n").split("\n")
    sz = sizes(lines)
    total = sum(sz)
    off = 0; k = 0; lab = {}
    for l in lines:
        if is_inst(l): off += sz[k]; k += 1
        elif l.strip().endswith(":"): lab[l.strip()[:-1]] = off
    assert lab["L_q0"] <= 256, lab["L_q0"]
    PFS = (total - 64 + 190) // 191
    assert PFS <= 60
    if prefetch:
        txt = txt.replace("v_mul_u32_u24 v7, 33, v0", f"v_mul_u32_u24 v7, {PFS}, v0").replace("offset:-3333", f"offset:{-lab['L_pc'] - 64 * PFS}")
    txt += f"    .fill {max(0, 192 * PFS + 64 - total) // 4 + 16}, 4, 0xbf810000\n"
    open(fname, "w").write(wrap(txt, 256, 768, 24576, 168, sgpr=96, extra_desc="  .amdhsa_float_denorm_mode_32 3\n"))
    return total, lab

if __name__ == "__main__":
    print(gen("c0.s"))
    gen("c0_st.s", stamps=True)
```

```python
import genc
genc.gen("../cdna_kernels/c1.s", n0=2, n1=6, nb=6)
genc.gen("../cdna_kernels/c2.s", n0=4, n1=4)
genc.gen("../cdna_kernels/c3.s", n0=3, n1=6, nb=6)
genc.gen("../cdna_kernels/c4.s", n0=2, n1=6, nb=6, opipe=True)
```
